```python
import torch

def _softmax(x, axis=-1):
    return torch.softmax(x, dim=axis)
def _gelu(x):
    return torch.nn.functional.gelu(x, approximate="tanh")
def _silu(x):
    return torch.nn.functional.silu(x)
def _sigmoid(x):
    return torch.sigmoid(x)
def _layernorm(x, axis=-1, eps=1e-5):
    m = x.mean(dim=axis, keepdim=True)
    v = x.var(dim=axis, keepdim=True, unbiased=False)
    return (x - m) / torch.sqrt(v + eps)
def _scatter_add(tgt, idx, src, axis=0):
    return tgt.clone().index_add_(axis, idx, src)
def _segment_sum(src, seg, n):
    out = torch.zeros((n,) + src.shape[1:], dtype=src.dtype)
    return out.index_add_(0, seg, src)
def _pad(x, pw):
    flat = tuple(v for pair in reversed(pw) for v in pair)
    return torch.nn.functional.pad(x, flat)

kernel_name = 'standalone__gqa_softmax__near_ridge'

def setup_inputs():

    _w = (lambda a: (lambda t: t.to(torch.bfloat16) if t.is_floating_point() else t)(torch.as_tensor(a)))
    B, Hq, Hkv, Sq, Sk, D = 16, 32, 8, 288, 512, 128
    return {
        "q": _w((lambda *s: torch.randn(*s, dtype=torch.bfloat16) * 0.8)(B, Hq, Sq, D)),
        "k": _w((lambda *s: torch.randn(*s, dtype=torch.bfloat16) * 0.8)(B, Hkv, Sk, D)),
        "v": _w((lambda *s: torch.randn(*s, dtype=torch.bfloat16) * 0.05)(B, Hkv, Sk, D)),
    }

def reference(q, k, v):
    B, Hq, Sq, D = q.shape
    Hkv = k.shape[1]
    rep = Hq // Hkv
    k = (lambda x, n, axis: torch.repeat_interleave(x, n, dim=axis))(k, rep, axis=1)
    v = (lambda x, n, axis: torch.repeat_interleave(x, n, dim=axis))(v, rep, axis=1)
    scale = D ** -0.5
    scores = torch.einsum("bhqd,bhkd->bhqk", q, k) * scale
    p = _softmax(scores, axis=-1)
    return torch.einsum("bhqk,bhkd->bhqd", p, v)
```

```python
import struct
import sys

NAME = "standalone__gqa_softmax__near_ridge"
NT = 18

PBUF = [0, 32768]
VST = 65536
QSTR = 528
QBUF = [131072, 131072 + 16 * QSTR]
LBUF = [147968, 147968 + 1024]
FLAG = 150016
MAXB = 150272
LDS_BYTES = 151296

OPT = dict(prio_qk=1, prio_pv=0, vdma_early=1, win=40, force_fb=0, nt_store=0, stamps=0)
for a in sys.argv[1:]:
    if "=" in a:
        k, v = a.split("=")
        if k in OPT:
            OPT[k] = int(v)
OUT = [a for a in sys.argv[1:] if "=" not in a]
OUT = OUT[0] if OUT else "cdna_kernels/%s.s" % NAME


def f2u(x):
    return struct.unpack("<I", struct.pack("<f", x))[0]


class E:
    def __init__(s):
        s.lines = []
        s.lds = []
        s.vm = []

    def i(s, t):
        s.lines.append("    " + t)

    def c(s, t):
        s.lines.append("    ; " + t)

    def lab(s, t):
        s.lines.append(t + ":")

    def ldsop(s, t, tag):
        s.i(t)
        s.lds.append(tag)

    def vmop(s, t, tag):
        s.i(t)
        s.vm.append(tag)

    def wl(s, tag):
        if tag not in s.lds:
            return
        idx = len(s.lds) - 1 - s.lds[::-1].index(tag)
        n = min(len(s.lds) - 1 - idx, 15)
        s.i("s_waitcnt lgkmcnt(%d)" % n)
        s.lds = s.lds[len(s.lds) - n:] if n else []

    def wv(s, tag):
        if tag not in s.vm:
            return
        idx = len(s.vm) - 1 - s.vm[::-1].index(tag)
        n = min(len(s.vm) - 1 - idx, 63)
        s.i("s_waitcnt vmcnt(%d)" % n)
        s.vm = s.vm[len(s.vm) - n:] if n else []

    def wl0(s):
        s.i("s_waitcnt lgkmcnt(0)")
        s.lds = []

    def wv0(s):
        s.i("s_waitcnt vmcnt(0)")
        s.vm = []


def vr(a, n=1):
    return "v%d" % a if n == 1 else "v[%d:%d]" % (a, a + n - 1)


MFMA = "v_mfma_f32_32x32x16_bf16"

Q_QA, Q_PA, Q_LA = 1, 2, 3
Q_L0, Q_L1 = 4, 5
Q_T = 6
Q_PK = [16, 24]
Q_QF = 32
Q_S = 64
Q_K = 128


def kf(j, s):
    return Q_K + (j * 8 + s) * 4


def sm_groups(j, ppar, set_, first_of_tile, last_of_tile):
    gs = []
    pk = Q_PK[set_]
    for g in range(8):
        a = Q_S + 16 * j + 2 * g
        L = [("v", "v_exp_f32 v%d, v%d" % (a, a)), ("v", "v_exp_f32 v%d, v%d" % (a + 1, a + 1))]
        if first_of_tile and g == 0:
            L += [("v", "v_mov_b32 v%d, v%d" % (Q_L0, a)), ("v", "v_mov_b32 v%d, v%d" % (Q_L1, a + 1))]
        else:
            L += [("v", "v_add_f32 v%d, v%d, v%d" % (Q_L0, Q_L0, a)),
                  ("v", "v_add_f32 v%d, v%d, v%d" % (Q_L1, Q_L1, a + 1))]
        L += [("v", "v_cvt_pk_bf16_f32 v%d, v%d, v%d" % (pk + g, a, a + 1))]
        if g == 3 or g == 7:
            u = g >> 2
            off = PBUF[ppar] + (2 * j + u) * 1024
            L += [("l", "ds_write_b128 v%d, %s offset:%d" % (Q_PA, vr(pk + 4 * u, 4), off), "pw")]
        if last_of_tile and g == 7:
            L += [("v", "v_add_f32 v%d, v%d, v%d" % (Q_T, Q_L0, Q_L1)),
                  ("l", "ds_write_b32 v%d, v%d offset:%d" % (Q_LA, Q_T, ppar * 1024), "lw")]
        gs.append(L)
    return gs


def emit_list(e, L):
    for it in L:
        if it[0] == "l":
            e.ldsop(it[1], it[2])
        else:
            e.i(it[1])


def qk_iter(e, par, first=False, last=False):
    pp = par ^ 1
    fill = [[] for _ in range(32)]
    if not first:
        g2 = sm_groups(2, pp, 0, False, False)
        fill[0] += g2[6]
        fill[1] += g2[7]
        g3 = sm_groups(3, pp, 1, False, True)
        for k in range(8):
            fill[2 + k] += g3[k]
    g0 = sm_groups(0, par, 0, True, False)
    g1 = sm_groups(1, par, 1, False, False)
    g2 = sm_groups(2, par, 0, False, False)
    for k in range(8):
        fill[10 + k] += g0[k]
        fill[18 + k] += g1[k]
    for k in range(6):
        fill[26 + k] += g2[k]
    for m in range(32):
        j, s = m >> 3, m & 7
        if m == 10:
            e.wl0()
            e.i("s_barrier")
        if first and s == 0:
            e.wv("k%d" % j)
        if j == 0:
            e.wl("q%d" % s)
        d = vr(Q_S + 16 * j, 16)
        e.i("%s %s, %s, %s, %s" % (MFMA, d, vr(kf(j, s), 4), vr(Q_QF + 4 * s, 4), "0" if s == 0 else d))
        if j == 3 and not last:
            e.ldsop("ds_read_b128 %s, v%d offset:%d" % (vr(Q_QF + 4 * s, 4), Q_QA, pp * 16 * QSTR + s * 2 * QSTR),
                    "q%d" % s)
        if first and m in (7, 8, 9) :
            e.i("s_nop 7")
        emit_list(e, fill[m])


def qk_tail(e, par):
    g2 = sm_groups(2, par, 0, False, False)
    emit_list(e, g2[6])
    emit_list(e, g2[7])
    e.i("s_nop 7")
    e.i("s_nop 3")
    for g in sm_groups(3, par, 1, False, True):
        emit_list(e, g)
    e.wl0()
    e.i("s_barrier")


def qk_program(e):
    e.c("---- QK wave prologue")
    e.i("v_and_b32 v6, 31, v0")
    e.i("v_lshrrev_b32 v7, 5, v0")
    e.i("s_lshl_b32 s30, s25, 15")
    e.i("v_lshlrev_b32 v8, 8, v6")
    e.i("v_lshl_add_u32 v8, v7, 4, v8")
    e.i("v_add_u32 v8, s30, v8")
    e.i("s_mov_b32 s40, 0")
    e.i("s_mov_b32 s41, 8192")
    e.i("s_mov_b32 s42, 16384")
    e.i("s_mov_b32 s43, 24576")
    for j in range(4):
        for s in range(8):
            e.vmop("buffer_load_dwordx4 %s, v8, s[16:19], s%d offen offset:%d" % (vr(kf(j, s), 4), 40 + j, s * 32),
                   "k%d" % j)
    e.i("v_mul_u32_u24 v9, %d, v7" % QSTR)
    e.i("v_lshl_add_u32 v9, v6, 4, v9")
    e.i("v_add_u32 v%d, %d, v9" % (Q_QA, QBUF[0]))
    e.i("s_lshl_b32 s30, s25, 13")
    e.i("v_lshlrev_b32 v9, 4, v0")
    e.i("v_add_u32 v%d, s30, v9" % Q_PA)
    e.i("s_lshl_b32 s30, s25, 8")
    e.i("s_add_u32 s30, s30, %d" % LBUF[0])
    e.i("v_lshlrev_b32 v9, 2, v0")
    e.i("v_add_u32 v%d, s30, v9" % Q_LA)
    if OPT["prio_qk"]:
        e.i("s_setprio %d" % OPT["prio_qk"])
    e.i("s_barrier")
    for s in range(8):
        e.ldsop("ds_read_b128 %s, v%d offset:%d" % (vr(Q_QF + 4 * s, 4), Q_QA, s * 2 * QSTR), "q%d" % s)
    qk_iter(e, 0, first=True)
    st = list(e.lds)
    e.i("s_mov_b32 s26, 8")
    e.lab("L_qk_loop")
    qk_iter(e, 1)
    qk_iter(e, 0)
    assert e.lds == st, (e.lds, st)
    e.i("s_sub_u32 s26, s26, 1")
    e.i("s_cmp_lg_u32 s26, 0")
    e.i("s_cbranch_scc1 L_qk_loop")
    qk_iter(e, 1, last=True)
    qk_tail(e, 1)


def qk_fallback(e):
    e.i("s_barrier")
    for s in range(8):
        e.i("ds_read_b128 %s, v%d offset:%d" % (vr(Q_QF + 4 * s, 4), Q_QA, s * 2 * QSTR))
    e.i("s_waitcnt lgkmcnt(0)")
    for j in range(4):
        for s in range(8):
            d = vr(Q_S + 16 * j, 16)
            e.i("%s %s, %s, %s, %s" % (MFMA, d, vr(kf(j, s), 4), vr(Q_QF + 4 * s, 4), "0" if s == 0 else d))
    e.i("s_nop 7")
    e.i("s_nop 7")
    e.i("v_max_f32 v6, v%d, v%d" % (Q_S, Q_S + 1))
    for k in range(1, 32):
        e.i("v_max3_f32 v6, v6, v%d, v%d" % (Q_S + 2 * k, Q_S + 2 * k + 1))
    e.i("v_mov_b32 v7, v6")
    e.i("s_nop 1")
    e.i("v_permlane32_swap_b32 v6, v7")
    e.i("s_nop 1")
    e.i("v_max_f32 v6, v6, v7")
    e.i("v_lshlrev_b32 v8, 2, v0")
    e.i("v_add_u32 v8, %d, v8" % MAXB)
    e.i("s_lshl_b32 s30, s25, 8")
    e.i("v_add_u32 v9, s30, v8")
    e.i("ds_write_b32 v9, v6")
    e.i("s_waitcnt lgkmcnt(0)")
    e.i("s_barrier")
    for k in range(4):
        e.i("ds_read_b32 v%d, v8 offset:%d" % (10 + k, 256 * k))
    e.i("s_waitcnt lgkmcnt(0)")
    e.i("v_max3_f32 v6, v10, v11, v12")
    e.i("v_max_f32 v6, v6, v13")
    for k in range(64):
        e.i("v_sub_f32 v%d, v%d, v6" % (Q_S + k, Q_S + k))
    for j in range(4):
        for g in sm_groups(j, 0, j & 1, j == 0, j == 3):
            for it in g:
                e.i(it[1])
    e.i("s_waitcnt lgkmcnt(0)")
    e.i("s_barrier")


P_PA, P_LA0, P_QG, P_QW, P_OA = 1, 2, 3, 4, 5
P_RI = [6, 7]
P_T = 8
P_TR, P_LA1, P_VG = 48, 0, 49
P_QS = [16, 24]
P_ACC = [32, 48]
P_RING = 64
P_V = 128


def q_scale(x, n):
    L = []
    for k in range(n):
        t = P_T + 2 * (k & 1)
        L += ["v_lshlrev_b32 v%d, 16, v%d" % (t, x + k),
              "v_and_b32 v%d, 0xffff0000, v%d" % (t + 1, x + k),
              "v_mul_f32 v%d, s29, v%d" % (t, t),
              "v_mul_f32 v%d, s29, v%d" % (t + 1, t + 1),
              "v_cvt_pk_bf16_f32 v%d, v%d, v%d" % (x + k, t, t + 1)]
    return L


def q_load(e, x, tag, soff):
    e.vmop("buffer_load_dwordx4 %s, v%d, s[12:15], %s offen" % (vr(x, 4), P_QG, soff), tag)
    e.vmop("buffer_load_dwordx4 %s, v%d, s[12:15], %s offen offset:128" % (vr(x + 4, 4), P_QG, soff), tag)


def q_write(e, x, par):
    e.ldsop("ds_write_b128 v%d, %s offset:%d" % (P_QW, vr(x, 4), par * 16 * QSTR), "qw")
    e.ldsop("ds_write_b128 v%d, %s offset:%d" % (P_QW, vr(x + 4, 4), par * 16 * QSTR + 8 * QSTR), "qw")


def l_reduce(ri, check):
    t = P_T
    L = ["v_add_f32 v%d, v%d, v%d" % (t, t, t + 1), "v_add_f32 v%d, v%d, v%d" % (t + 2, t + 2, t + 3),
         "v_add_f32 v%d, v%d, v%d" % (t + 4, t + 4, t + 5), "v_add_f32 v%d, v%d, v%d" % (t + 6, t + 6, t + 7),
         "v_add_f32 v%d, v%d, v%d" % (t, t, t + 2), "v_add_f32 v%d, v%d, v%d" % (t + 4, t + 4, t + 6),
         "v_add_f32 v%d, v%d, v%d" % (t, t, t + 4),
         "v_rcp_f32 v%d, v%d" % (ri, t)]
    if check:
        L += ["v_cmp_nle_f32 vcc, s46, v%d" % t,
              "v_cmp_nge_f32 s[30:31], s47, v%d" % t,
              "s_nop 1",
              "s_or_b64 vcc, vcc, s[30:31]",
              "s_cmp_lg_u64 vcc, 0",
              "s_cselect_b32 s30, 1, 0",
              "s_lshl_b32 s30, s30, s33",
              "s_or_b32 s27, s27, s30",
              "s_add_u32 s33, s33, 1"]
    return L


def l_reads(e, par):
    la = P_LA1 if par else P_LA0
    for k in range(4):
        e.ldsop("ds_read2_b32 %s, v%d offset0:%d offset1:%d" % (vr(P_T + 2 * k, 2), la, 64 * k, 64 * k + 32), "l")


def epilogue(acc, ri):
    L = []
    for k in range(8):
        L += ["v_mul_f32 v%d, v%d, v%d" % (acc + 2 * k, acc + 2 * k, ri),
              "v_mul_f32 v%d, v%d, v%d" % (acc + 2 * k + 1, acc + 2 * k + 1, ri),
              "v_cvt_pk_bf16_f32 v%d, v%d, v%d" % (acc + k, acc + 2 * k, acc + 2 * k + 1)]
    return L


def o_store(e, acc, soff):
    nt = " nt" if OPT["nt_store"] else ""
    e.vmop("buffer_store_dwordx4 %s, v%d, s[20:23], %s offen%s" % (vr(acc, 4), P_OA, soff, nt), "o")
    e.vmop("buffer_store_dwordx4 %s, v%d, s[20:23], %s offen offset:32%s" % (vr(acc + 4, 4), P_OA, soff, nt), "o")


def p_read(e, par, f):
    e.ldsop("ds_read_b128 %s, v%d offset:%d" % (vr(P_RING + 4 * (f & 15), 4), P_PA, PBUF[par] + f * 1024), "p%d" % f)


def pv_interval(e, par, first=False, last=False):
    pp = par ^ 1
    accN, accO = P_ACC[par], P_ACC[pp]
    fill = [[] for _ in range(33)]
    if not first:
        ep = epilogue(accO, P_RI[pp])
        for k in range(8):
            fill[13 + k] += [("v", x) for x in ep[3 * k:3 * k + 3]]
        fill[22] += [("st",)]
    lr = l_reduce(P_RI[par], True)
    fill[4] += [("wl", "l")] + [("v", x) for x in lr[:4]]
    fill[5] += [("v", x) for x in lr[4:8]]
    fill[6] += [("v", x) for x in lr[8:]]
    if not last:
        qs = q_scale(P_QS[pp], 8)
        fill[21] += [("wv", "qs%d" % pp)]
        for k in range(10):
            fill[21 + k] += [("v", x) for x in qs[4 * k:4 * k + 4]]
        fill[31] += [("qw",)]
        fill[1] += [("ql",)]

    def do_fill(m):
        for it in fill[m]:
            if it[0] == "v":
                e.i(it[1])
            elif it[0] == "wl":
                e.wl(it[1])
            elif it[0] == "wv":
                e.wv(it[1])
            elif it[0] == "st":
                o_store(e, accO, "s35")
            elif it[0] == "qw":
                q_write(e, P_QS[pp], pp)
            elif it[0] == "ql":
                q_load(e, P_QS[par], "qs%d" % par, "s34")

    for m in range(32):
        if m < 8:
            if not first:
                f = 24 + m
                e.i("%s %s, %s, %s, %s" % (MFMA, vr(accO, 16), vr(P_V + 4 * f, 4), vr(P_RING + 4 * (f & 15), 4),
                                           vr(accO, 16)))
            p_read(e, par, m)
            if m < 2:
                la = P_LA1 if par else P_LA0
                for k in (2 * m, 2 * m + 1):
                    e.ldsop("ds_read2_b32 %s, v%d offset0:%d offset1:%d" % (vr(P_T + 2 * k, 2), la, 64 * k, 64 * k + 32),
                            "l")
        else:
            f = m - 8
            e.wl("p%d" % f)
            e.i("%s %s, %s, %s, %s" % (MFMA, vr(accN, 16), vr(P_V + 4 * f, 4), vr(P_RING + 4 * (f & 15), 4),
                                       "0" if f == 0 else vr(accN, 16)))
            p_read(e, par, f + 8)
        do_fill(m)
    e.i("s_add_u32 s34, s34, 8192")
    e.i("s_add_u32 s35, s35, 8192")
    e.wl0()
    if not last:
        e.i("s_barrier")


def pv_program(e):
    e.c("---- PV wave prologue")
    e.i("v_and_b32 v8, 31, v0")
    e.i("v_lshrrev_b32 v9, 5, v0")
    e.i("v_lshlrev_b32 v%d, 4, v0" % P_PA)
    e.i("v_lshlrev_b32 v10, 2, v8")
    e.i("v_add_u32 v%d, %d, v10" % (P_LA0, LBUF[0]))
    e.i("v_lshrrev_b32 v10, 3, v0")
    e.i("s_lshl_b32 s30, s25, 3")
    e.i("v_add_u32 v10, s30, v10")
    e.i("v_and_b32 v11, 7, v0")
    e.i("v_lshlrev_b32 v12, 8, v10")
    e.i("v_lshl_add_u32 v%d, v11, 4, v12" % P_QG)
    e.i("s_mov_b32 s36, 0")
    e.i("s_mov_b32 s37, 8192")
    e.i("s_mov_b32 s38, 16384")
    q_load(e, P_RING, "q0", "s36")
    q_load(e, P_RING + 8, "q1", "s37")
    q_load(e, P_RING + 16, "q2", "s38")
    e.i("v_mul_u32_u24 v12, %d, v11" % QSTR)
    e.i("v_lshl_add_u32 v12, v10, 4, v12")
    e.i("v_add_u32 v%d, %d, v12" % (P_QW, QBUF[0]))
    e.i("s_lshl_b32 s30, s25, 6")
    e.i("v_lshlrev_b32 v12, 8, v8")
    e.i("v_lshl_add_u32 v12, v9, 4, v12")
    e.i("v_add_u32 v%d, s30, v12" % P_OA)
    e.i("v_lshrrev_b32 v10, 2, v0")
    e.i("v_and_b32 v11, 3, v0")
    e.i("v_lshlrev_b32 v12, 8, v10")
    e.i("v_lshl_add_u32 v12, v11, 4, v12")
    e.i("v_add_u32 v%d, s30, v12" % P_VG)
    e.i("v_and_b32 v10, 3, v10")
    e.i("v_lshl_add_u32 v10, v9, 2, v10")
    e.i("v_lshlrev_b32 v10, 6, v10")
    e.i("v_bfe_u32 v12, v0, 4, 1")
    e.i("v_lshl_add_u32 v10, v12, 5, v10")
    e.i("v_and_b32 v12, 1, v11")
    e.i("v_lshl_add_u32 v10, v12, 4, v10")
    e.i("v_lshrrev_b32 v12, 1, v11")
    e.i("v_lshl_add_u32 v10, v12, 3, v10")
    e.i("s_lshl_b32 s39, s25, 14")
    e.i("s_add_u32 s39, s39, %d" % VST)
    e.i("v_add_u32 v%d, s39, v10" % P_TR)

    e.i("v_lshlrev_b32 v10, 2, v8")
    e.i("v_add_u32 v%d, %d, v10" % (P_LA1, LBUF[1]))

    def vdma(ks):
        e.i("s_add_u32 m0, s39, %d" % ((ks & 15) * 1024))
        e.i("s_mov_b32 s30, %d" % (ks * 4096))
        e.vmop("buffer_load_dwordx4 v%d, s[16:19], s30 offen lds" % P_VG, "d%d" % ks)

    if OPT["vdma_early"]:
        for ks in range(16):
            vdma(ks)
    e.i("s_mov_b32 s27, 0")
    e.i("s_mov_b32 s33, 0")
    e.i("s_mov_b32 s34, %d" % (4 * 8192))
    e.i("s_mov_b32 s35, %d" % ((1 << 32) - 8192))
    if OPT["prio_pv"]:
        e.i("s_setprio %d" % OPT["prio_pv"])
    for k, tag in enumerate(("q0", "q1")):
        e.wv(tag)
        for x in q_scale(P_RING + 8 * k, 8):
            e.i(x)
        q_write(e, P_RING + 8 * k, k)
    e.wl0()
    e.i("s_barrier")
    if not OPT["vdma_early"]:
        for ks in range(16):
            vdma(ks)
    e.i("s_barrier")
    e.wv("q2")
    for x in q_scale(P_RING + 16, 8):
        e.i(x)
    q_write(e, P_RING + 16, 0)
    e.i("s_mov_b32 s38, %d" % (3 * 8192))
    q_load(e, P_QS[1], "qs1", "s38")
    e.wl0()
    e.i("s_barrier")
    for b in range(8):
        e.wv("d%d" % (4 * b + 3))
        for ks in range(4 * b, 4 * b + 4):
            e.ldsop("ds_read_b64_tr_b16 %s, v%d offset:%d" % (vr(P_V + 4 * ks, 2), P_TR, (ks & 15) * 1024), "tr")
            e.ldsop("ds_read_b64_tr_b16 %s, v%d offset:%d" % (vr(P_V + 4 * ks + 2, 2), P_TR, (ks & 15) * 1024 + 512),
                    "tr")
        e.wl0()
        if b < 4:
            for ks in range(4 * b + 16, 4 * b + 20):
                vdma(ks)
    pv_interval(e, 0, first=True)
    st = (list(e.lds), list(e.vm))
    e.i("s_mov_b32 s26, 8")
    e.lab("L_pv_loop")
    pv_interval(e, 1)
    pv_interval(e, 0)
    e.i("s_sub_u32 s26, s26, 1")
    e.i("s_cmp_lg_u32 s26, 0")
    e.i("s_cbranch_scc1 L_pv_loop")
    assert (e.lds, e.vm[-6:]) == (st[0], e.vm[-6:]), (e.lds, e.vm, st)
    pv_interval(e, 1, last=True)
    acc = P_ACC[1]
    for f in range(24, 32):
        e.i("%s %s, %s, %s, %s" % (MFMA, vr(acc, 16), vr(P_V + 4 * f, 4), vr(P_RING + 4 * (f & 15), 4), vr(acc, 16)))
    e.i("s_nop 7")
    e.i("s_nop 7")
    for x in epilogue(acc, P_RI[1]):
        e.i(x)
    o_store(e, acc, "s35")
    e.i("v_mov_b32 v8, %d" % FLAG)
    e.i("v_mov_b32 v9, s27")
    e.i("ds_write_b32 v8, v9")
    e.i("s_waitcnt lgkmcnt(0)")


def pv_fallback(e):
    e.i("buffer_load_dwordx4 %s, v%d, s[12:15], s45 offen" % (vr(16, 4), P_QG))
    e.i("buffer_load_dwordx4 %s, v%d, s[12:15], s45 offen offset:128" % (vr(20, 4), P_QG))
    e.i("s_waitcnt vmcnt(0)")
    for x in q_scale(16, 8):
        e.i(x)
    e.i("ds_write_b128 v%d, %s" % (P_QW, vr(16, 4)))
    e.i("ds_write_b128 v%d, %s offset:%d" % (P_QW, vr(20, 4), 8 * QSTR))
    e.i("s_waitcnt lgkmcnt(0)")
    e.i("s_barrier")
    e.i("s_barrier")
    e.i("s_barrier")
    for k in range(4):
        e.i("ds_read2_b32 %s, v%d offset0:%d offset1:%d" % (vr(P_T + 2 * k, 2), P_LA0, 64 * k, 64 * k + 32))
    e.i("s_waitcnt lgkmcnt(0)")
    for x in l_reduce(P_RI[0], False):
        e.i(x)
    acc = P_ACC[0]
    for b in range(4):
        for k in range(8):
            e.i("ds_read_b128 %s, v%d offset:%d" % (vr(P_RING + 4 * k, 4), P_PA, (8 * b + k) * 1024))
        e.i("s_waitcnt lgkmcnt(0)")
        for k in range(8):
            f = 8 * b + k
            e.i("%s %s, %s, %s, %s" % (MFMA, vr(acc, 16), vr(P_V + 4 * f, 4), vr(P_RING + 4 * k, 4),
                                       "0" if f == 0 else vr(acc, 16)))
        e.i("s_nop 7")
    e.i("s_nop 7")
    e.i("s_nop 7")
    for x in epilogue(acc, P_RI[0]):
        e.i(x)
    e.i("buffer_store_dwordx4 %s, v%d, s[20:23], s45 offen" % (vr(acc, 4), P_OA))
    e.i("buffer_store_dwordx4 %s, v%d, s[20:23], s45 offen offset:32" % (vr(acc + 4, 4), P_OA))
    e.i("s_waitcnt vmcnt(0)")


def main():
    win = OPT["win"]
    lo, hi = f2u(2.0 ** -win), f2u(2.0 ** win)
    if OPT["force_fb"]:
        hi = f2u(2.0 ** -30)

    e = E()
    h = e.lines
    hdr = open("cdna_kernels/%s.s.ref" % NAME).read().split("\n")
    for ln in hdr:
        if ln.startswith("; @launch"):
            h.append("; @launch grid=(256,1,1) block=(512,1,1) lds=%d" % LDS_BYTES)
        elif ln.startswith(";"):
            h.append(ln)
        else:
            break
    h.append('.amdgcn_target "amdgcn-amd-amdhsa--gfx950"')
    h.append(".text")
    h.append(".globl %s_kernel" % NAME)
    h.append(".p2align 8")
    h.append(".type %s_kernel,@function" % NAME)
    h.append("%s_kernel:" % NAME)
    e.i("s_cmp_ge_u32 s2, 256")
    e.i("s_cbranch_scc1 L_end")
    e.i("s_load_dwordx4 s[4:7], s[0:1], 0")
    e.i("s_load_dwordx4 s[8:11], s[0:1], 16")
    e.i("v_lshrrev_b32 v1, 6, v0")
    e.i("v_and_b32 v0, 63, v0")
    e.c("group g = (wg>>4)*8 + (wg&7), half = (wg>>3)&1: both halves of a kv head land on one XCD")
    e.i("s_lshr_b32 s3, s2, 4")
    e.i("s_lshl_b32 s3, s3, 3")
    e.i("s_and_b32 s30, s2, 7")
    e.i("s_add_u32 s3, s3, s30")
    e.i("v_readfirstlane_b32 s24, v1")
    e.i("s_bfe_u32 s30, s2, 0x10003")
    e.i("s_lshl_b32 s31, s3, 1")
    e.i("s_add_u32 s31, s31, s30")
    e.i("s_mul_i32 s31, s31, %d" % (576 * 256))
    e.i("s_lshl_b32 s32, s3, 17")
    e.i("s_and_b32 s25, s24, 3")
    e.i("s_mov_b32 s29, 0x%08x" % f2u(1.4426950408889634 / (128.0 ** 0.5)))
    e.i("s_mov_b32 s46, 0x%08x" % lo)
    e.i("s_mov_b32 s47, 0x%08x" % hi)
    e.i("s_waitcnt lgkmcnt(0)")
    e.i("s_add_u32 s12, s4, s31")
    e.i("s_addc_u32 s13, s5, 0")
    e.i("s_mov_b32 s14, %d" % (576 * 256))
    e.i("s_mov_b32 s15, 0x00020000")
    e.i("s_add_u32 s20, s10, s31")
    e.i("s_addc_u32 s21, s11, 0")
    e.i("s_mov_b32 s22, %d" % (576 * 256))
    e.i("s_mov_b32 s23, 0x00020000")
    e.i("s_mov_b32 s18, 131072")
    e.i("s_mov_b32 s19, 0x00020000")
    e.i("s_cmp_ge_u32 s24, 4")
    e.i("s_cbranch_scc1 L_pv")
    e.i("s_add_u32 s16, s6, s32")
    e.i("s_addc_u32 s17, s7, 0")
    qk_program(e)
    e.i("s_branch L_join")
    e.lab("L_pv")
    e.lds, e.vm = [], []
    e.i("s_add_u32 s16, s8, s32")
    e.i("s_addc_u32 s17, s9, 0")
    pv_program(e)
    e.lab("L_join")
    e.c("---- tiles whose row sums left the safe window are redone with the true row max")
    e.i("s_barrier")
    e.i("v_mov_b32 v8, %d" % FLAG)
    e.i("ds_read_b32 v9, v8")
    e.i("s_waitcnt lgkmcnt(0)")
    e.i("v_readfirstlane_b32 s27, v9")
    e.i("s_nop 3")
    e.i("s_cmp_eq_u32 s27, 0")
    e.i("s_cbranch_scc1 L_done")
    e.i("s_waitcnt vmcnt(0)")
    e.i("s_mov_b32 s44, 0")
    e.lab("L_fb_loop")
    e.i("s_lshr_b32 s30, s27, s44")
    e.i("s_and_b32 s30, s30, 1")
    e.i("s_cmp_eq_u32 s30, 0")
    e.i("s_cbranch_scc1 L_fb_next")
    e.i("s_lshl_b32 s45, s44, 13")
    e.i("s_cmp_ge_u32 s24, 4")
    e.i("s_cbranch_scc1 L_fb_pv")
    qk_fallback(e)
    e.i("s_branch L_fb_next")
    e.lab("L_fb_pv")
    pv_fallback(e)
    e.lab("L_fb_next")
    e.i("s_add_u32 s44, s44, 1")
    e.i("s_cmp_lt_u32 s44, %d" % NT)
    e.i("s_cbranch_scc1 L_fb_loop")
    e.lab("L_done")
    e.i("s_waitcnt vmcnt(0)")
    e.lab("L_end")
    e.i("s_endpgm")
    h.append('.section .rodata,"a"')
    h.append(".p2align 6")
    h.append(".amdhsa_kernel %s_kernel" % NAME)
    for x in ("next_free_vgpr 256", "next_free_sgpr 64", "accum_offset 256", "group_segment_fixed_size 0",
              "kernarg_size 48", "user_sgpr_count 2", "user_sgpr_kernarg_segment_ptr 1",
              "system_sgpr_workgroup_id_x 1"):
        h.append("  .amdhsa_" + x)
    h.append(".end_amdhsa_kernel")
    open(OUT, "w").write("\n".join(h) + "\n")


main()
```

```python
import struct
import sys

NAME = "standalone__gqa_softmax__near_ridge"
NT = 18

PBUF = [0, 32768]
VST = 65536
QSTR = 528
QBUF = [131072, 131072 + 16 * QSTR]
LBUF = [147968, 147968 + 1024]
FLAG = 150016
MAXB = 150272
LDS_BYTES = 151296

OPT = dict(prio_qk=1, prio_pv=0, vdma_early=0, bar_slot=12, rotk=0, rotq=0, split=0, dbg=0, dyn=0, dynpv=0, pearly=1, ntq=1, ntk=1, ntv=1, qw_slot=24, ql_slot=1, win=40, force_fb=0, nt_store=1, stamps=0)
for a in sys.argv[1:]:
    if "=" in a:
        k, v = a.split("=")
        if k in OPT:
            OPT[k] = int(v)
NTS = ["", " nt", " sc1", " sc1 nt", " sc0 sc1", " sc0 sc1 nt", " sc0", " sc0 nt"]
OUT = [a for a in sys.argv[1:] if "=" not in a]
OUT = OUT[0] if OUT else "cdna_kernels/%s.s" % NAME


def f2u(x):
    return struct.unpack("<I", struct.pack("<f", x))[0]


class E:
    def __init__(s):
        s.lines = []
        s.lds = []
        s.vm = []
        s.nst = 0
        s.role = None
        s.names = []

    def i(s, t):
        d = OPT["dbg"]
        if d and s.role:
            if s.role == "pv" and d & 1 and t.startswith("v_mfma"):
                return
            if s.role == "qk" and d & 2 and t.startswith("v_mfma"):
                return
            if s.role == "qk" and d & 4 and t.split()[0] in ("v_exp_f32", "v_add_f32", "v_cvt_pk_bf16_f32"):
                return
            if s.role == "pv" and d & 8 and t.startswith("ds_read_b128"):
                return
            if s.role == "pv" and d & 16 and t.startswith("buffer_"):
                return
            if s.role == "qk" and d & 32 and t.startswith("v_exp"):
                return
            if s.role == "qk" and d & 64 and t.startswith("ds_write"):
                return
            if s.role == "qk" and d & 128 and t.startswith("v_add_f32"):
                return
        s.lines.append("    " + t)

    def c(s, t):
        s.lines.append("    ; " + t)

    def lab(s, t):
        s.lines.append(t + ":")

    def ldsop(s, t, tag):
        s.i(t)
        s.lds.append(tag)

    def vmop(s, t, tag):
        s.i(t)
        s.vm.append(tag)

    def wl(s, tag):
        if tag not in s.lds:
            return
        idx = len(s.lds) - 1 - s.lds[::-1].index(tag)
        n = min(len(s.lds) - 1 - idx, 15)
        s.i("s_waitcnt lgkmcnt(%d)" % n)
        s.lds = s.lds[len(s.lds) - n:] if n else []

    def wv(s, tag):
        if tag not in s.vm:
            return
        idx = len(s.vm) - 1 - s.vm[::-1].index(tag)
        n = min(len(s.vm) - 1 - idx, 63)
        s.i("s_waitcnt vmcnt(%d)" % n)
        s.vm = s.vm[len(s.vm) - n:] if n else []

    def wl0(s):
        s.i("s_waitcnt lgkmcnt(0)")
        s.lds = []

    def stamp(s, name):
        if OPT["stamps"] == 2:
            s.i("s_memtime s[50:51]")
            s.i("s_waitcnt lgkmcnt(0)")
            s.lds = []
            s.i("s_mov_b32 s%d, s50" % (52 + s.nst))
            s.nst += 1
            s.names.append(name)

    def bar(s):
        if OPT["stamps"] == 1:
            s.i("s_memtime s[50:51]")
            s.i("s_waitcnt lgkmcnt(0)")
            s.lds = []
            s.i("s_mov_b32 m0, s49")
            s.i("s_nop 0")
            s.i("s_movreld_b32 s52, s96")
            s.i("s_movreld_b32 s53, s50")
            s.i("s_add_u32 s49, s49, 2")
            s.i("s_barrier")
            s.i("s_memtime s[96:97]")
        else:
            s.i("s_barrier")

    def wv0(s):
        s.i("s_waitcnt vmcnt(0)")
        s.vm = []


def vr(a, n=1):
    return "v%d" % a if n == 1 else "v[%d:%d]" % (a, a + n - 1)


MFMA = "v_mfma_f32_32x32x16_bf16"

Q_QA, Q_PA, Q_LA = 1, 2, 3
Q_L0, Q_L1 = 4, 5
Q_T = 6
Q_PK = [16, 24]
Q_QF = 32
Q_S = 64
Q_K = 128


def kf(j, s):
    return Q_K + (j * 8 + s) * 4


def sm_groups(j, ppar, set_, first_of_tile, last_of_tile):
    gs = []
    pk = Q_PK[set_]
    for g in range(8):
        a = Q_S + 16 * j + 2 * g
        L = [("v", "v_exp_f32 v%d, v%d" % (a, a)), ("v", "v_exp_f32 v%d, v%d" % (a + 1, a + 1))]
        if first_of_tile and g == 0:
            L += [("v", "v_mov_b32 v%d, v%d" % (Q_L0, a)), ("v", "v_mov_b32 v%d, v%d" % (Q_L1, a + 1))]
        else:
            L += [("v", "v_add_f32 v%d, v%d, v%d" % (Q_L0, Q_L0, a)),
                  ("v", "v_add_f32 v%d, v%d, v%d" % (Q_L1, Q_L1, a + 1))]
        L += [("v", "v_cvt_pk_bf16_f32 v%d, v%d, v%d" % (pk + g, a, a + 1))]
        if g == 3 or g == 7:
            u = g >> 2
            off = PBUF[ppar] + (2 * j + u) * 1024
            L += [("l", "ds_write_b128 v%d, %s offset:%d" % (Q_PA, vr(pk + 4 * u, 4), off), "pw")]
        if last_of_tile and g == 7:
            L += [("v", "v_add_f32 v%d, v%d, v%d" % (Q_T, Q_L0, Q_L1)),
                  ("l", "ds_write_b32 v%d, v%d offset:%d" % (Q_LA, Q_T, ppar * 1024), "lw")]
        gs.append(L)
    return gs


def emit_list(e, L):
    for it in L:
        if it[0] == "l":
            e.ldsop(it[1], it[2])
        else:
            e.i(it[1])


def k_dma(e, j):
    for hf in range(2):
        e.i("s_add_u32 m0, s41, %d" % (PBUF[j & 1] + hf * 4096))
        e.i("s_add_u32 s30, s40, %d" % (j * 8192))
        e.i("s_xor_b32 s30, s30, s42")
        if hf:
            e.i("s_add_u32 s30, s30, 4096")
        for i in range(4):
            e.vmop("buffer_load_dwordx4 v%d, s[16:19], s30 offen offset:%d%s lds" % (16 + i, i * 1024, NTS[OPT["ntk"]]), "k%d" % j)


def k_read(e, j):
    e.wv("k%d" % j)
    for s in range(8):
        e.ldsop("ds_read_b128 %s, v%d offset:%d" % (vr(kf(j, s), 4), 8 + s, PBUF[j & 1]), "kr%d" % j)


def k_scale(e, j):
    if j >= 2:
        e.wl("kr%d" % j)
    for r in range(kf(j, 0), kf(j, 0) + 32):
        e.i("v_lshlrev_b32 v6, 16, v%d" % r)
        e.i("v_and_b32 v7, 0xffff0000, v%d" % r)
        e.i("v_mul_f32 v6, s29, v6")
        e.i("v_mul_f32 v7, s29, v7")
        e.i("v_cvt_pk_bf16_f32 v%d, v6, v7" % r)


def qk_iter(e, par, first=False, last=False):
    pp = par ^ 1
    fill = [[] for _ in range(32)]
    if not first:
        g2 = sm_groups(2, pp, 0, False, False)
        fill[0] += g2[6]
        fill[1] += g2[7]
        g3 = sm_groups(3, pp, 1, False, True)
        for k in range(8):
            fill[2 + k] += g3[k]
    g0 = sm_groups(0, par, 0, True, False)
    g1 = sm_groups(1, par, 1, False, False)
    g2 = sm_groups(2, par, 0, False, False)
    for k in range(8):
        fill[10 + k] += g0[k]
        fill[18 + k] += g1[k]
    for k in range(6):
        fill[26 + k] += g2[k]
    for m in range(32):
        j, s = m >> 3, m & 7
        if m == OPT["bar_slot"]:
            e.wl0()
            e.bar()
        if first and m == 10:
            e.stamp("B-1 out")
            k_read(e, 2)
            e.stamp("k2 landed")
        if first and m == 16:
            k_scale(e, 2)
            e.stamp("k2 scaled")
            k_read(e, 3)
            e.stamp("k3 landed")
        if first and m == 24:
            k_scale(e, 3)
            e.stamp("k3 scaled")
        if j == 0:
            e.wl("q%d" % s)
        d = vr(Q_S + 16 * j, 16)
        if OPT["dyn"] and not first:
            e.i("s_setprio %d" % OPT["dyn"])
        e.i("%s %s, %s, %s, %s" % (MFMA, d, vr(kf(j, s), 4), vr(Q_QF + 4 * s, 4), "0" if s == 0 else d))
        if OPT["dyn"] and not first:
            e.i("s_setprio %d" % OPT["prio_qk"])
        if j == 3 and not last:
            e.ldsop("ds_read_b128 %s, v%d offset:%d" % (vr(Q_QF + 4 * s, 4), Q_QA, pp * 16 * QSTR + s * 2 * QSTR),
                    "q%d" % s)
        if first and m in (7, 8, 9) :
            e.i("s_nop 7")
        emit_list(e, fill[m])


def qk_tail(e, par):
    g2 = sm_groups(2, par, 0, False, False)
    emit_list(e, g2[6])
    emit_list(e, g2[7])
    e.i("s_nop 7")
    e.i("s_nop 3")
    for g in sm_groups(3, par, 1, False, True):
        emit_list(e, g)
    e.wl0()
    e.bar()


def qk_program(e):
    e.c("---- QK wave prologue")
    e.i("v_and_b32 v6, 31, v0")
    e.i("v_lshrrev_b32 v7, 5, v0")
    e.i("s_lshl_b32 s40, s25, 15")
    e.i("s_lshl_b32 s41, s25, 13")
    e.c("DMA source: row r = lane>>4, slot = lane&15 holds chunk slot ^ (key&15)")
    e.i("v_lshrrev_b32 v8, 4, v0")
    e.i("v_and_b32 v9, 15, v0")
    e.i("v_xor_b32 v9, v9, v8")
    e.i("v_lshlrev_b32 v9, 4, v9")
    e.i("v_lshl_add_u32 v16, v8, 8, v9")
    for i in range(1, 4):
        e.i("v_xor_b32 v%d, %d, v16" % (16 + i, i << 6))
    e.stamp("start")
    k_dma(e, 0)
    k_dma(e, 1)
    e.stamp("k01 issued")
    e.c("fragment read address of step s: key*256 + ((2s+h) ^ (key&15))*16")
    e.i("v_and_b32 v9, 15, v6")
    e.i("v_xor_b32 v9, v9, v7")
    e.i("v_lshlrev_b32 v9, 4, v9")
    e.i("v_lshl_add_u32 v9, v6, 8, v9")
    e.i("v_add_u32 v8, s41, v9")
    e.i("v_mul_u32_u24 v20, %d, v7" % QSTR)
    e.i("v_lshl_add_u32 v20, v6, 4, v20")
    e.i("v_add_u32 v%d, %d, v20" % (Q_QA, QBUF[0]))
    e.i("v_lshlrev_b32 v20, 4, v0")
    e.i("v_add_u32 v%d, s41, v20" % Q_PA)
    e.i("s_lshl_b32 s30, s25, 8")
    e.i("s_add_u32 s30, s30, %d" % LBUF[0])
    e.i("v_lshlrev_b32 v20, 2, v0")
    e.i("v_add_u32 v%d, s30, v20" % Q_LA)
    for k in range(1, 8):
        e.i("v_xor_b32 v%d, %d, v8" % (8 + k, k << 5))
    k_read(e, 0)
    e.wl0()
    e.stamp("k0 read")
    k_dma(e, 2)
    k_scale(e, 0)
    e.stamp("k0 scaled")
    k_read(e, 1)
    e.wl0()
    e.stamp("k1 read")
    k_dma(e, 3)
    e.stamp("k3 issued")
    if OPT["prio_qk"]:
        e.i("s_setprio %d" % OPT["prio_qk"])
    e.bar()
    for s in range(8):
        e.ldsop("ds_read_b128 %s, v%d offset:%d" % (vr(Q_QF + 4 * s, 4), Q_QA, s * 2 * QSTR), "q%d" % s)
    e.stamp("P1 out")
    k_scale(e, 1)
    e.stamp("k1 scaled")
    qk_iter(e, 0, first=True)
    st = list(e.lds)
    e.i("s_mov_b32 s26, 8")
    e.lab("L_qk_loop")
    e.role = "qk"
    qk_iter(e, 1)
    qk_iter(e, 0)
    n = min(len(e.lds), len(st))
    assert e.lds[-n:] == st[-n:], (e.lds, st)
    e.i("s_sub_u32 s26, s26, 1")
    e.i("s_cmp_lg_u32 s26, 0")
    e.i("s_cbranch_scc1 L_qk_loop")
    e.role = None
    qk_iter(e, 1, last=True)
    qk_tail(e, 1)


def qk_fallback(e):
    e.bar()
    for s in range(8):
        e.i("ds_read_b128 %s, v%d offset:%d" % (vr(Q_QF + 4 * s, 4), Q_QA, s * 2 * QSTR))
    e.i("s_waitcnt lgkmcnt(0)")
    for j in range(4):
        for s in range(8):
            d = vr(Q_S + 16 * j, 16)
            e.i("%s %s, %s, %s, %s" % (MFMA, d, vr(kf(j, s), 4), vr(Q_QF + 4 * s, 4), "0" if s == 0 else d))
    e.i("s_nop 7")
    e.i("s_nop 7")
    e.i("v_max_f32 v6, v%d, v%d" % (Q_S, Q_S + 1))
    for k in range(1, 32):
        e.i("v_max3_f32 v6, v6, v%d, v%d" % (Q_S + 2 * k, Q_S + 2 * k + 1))
    e.i("v_mov_b32 v7, v6")
    e.i("s_nop 1")
    e.i("v_permlane32_swap_b32 v6, v7")
    e.i("s_nop 1")
    e.i("v_max_f32 v6, v6, v7")
    e.i("v_lshlrev_b32 v8, 2, v0")
    e.i("v_add_u32 v8, %d, v8" % MAXB)
    e.i("s_lshl_b32 s30, s25, 8")
    e.i("v_add_u32 v9, s30, v8")
    e.i("ds_write_b32 v9, v6")
    e.i("s_waitcnt lgkmcnt(0)")
    e.bar()
    for k in range(4):
        e.i("ds_read_b32 v%d, v8 offset:%d" % (10 + k, 256 * k))
    e.i("s_waitcnt lgkmcnt(0)")
    e.i("v_max3_f32 v6, v10, v11, v12")
    e.i("v_max_f32 v6, v6, v13")
    for k in range(64):
        e.i("v_sub_f32 v%d, v%d, v6" % (Q_S + k, Q_S + k))
    for j in range(4):
        for g in sm_groups(j, 0, j & 1, j == 0, j == 3):
            for it in g:
                e.i(it[1])
    e.i("s_waitcnt lgkmcnt(0)")
    e.bar()


P_PA, P_LA0, P_QG, P_QW, P_OA = 1, 2, 3, 4, 5
P_RI = [6, 7]
P_T = 8
P_TR, P_LA1, P_VG = 48, 0, 49
P_QS = [16, 24]
P_ACC = [32, 48]
P_RING = 64
P_V = 128


def q_scale(x, n):
    L = []
    for k in range(n):
        t = P_T + 2 * (k & 1)
        L += ["v_lshlrev_b32 v%d, 16, v%d" % (t, x + k),
              "v_and_b32 v%d, 0xffff0000, v%d" % (t + 1, x + k),
              "v_mul_f32 v%d, s29, v%d" % (t, t),
              "v_mul_f32 v%d, s29, v%d" % (t + 1, t + 1),
              "v_cvt_pk_bf16_f32 v%d, v%d, v%d" % (x + k, t, t + 1)]
    return L


def q_load(e, x, tag, soff):
    nt = NTS[OPT["ntq"]]
    e.vmop("buffer_load_dwordx4 %s, v%d, s[12:15], %s offen%s" % (vr(x, 4), P_QG, soff, nt), tag)
    e.vmop("buffer_load_dwordx4 %s, v%d, s[12:15], %s offen offset:128%s" % (vr(x + 4, 4), P_QG, soff, nt), tag)


def q_write(e, x, par):
    e.ldsop("ds_write_b128 v%d, %s offset:%d" % (P_QW, vr(x, 4), par * 16 * QSTR), "qw")
    e.ldsop("ds_write_b128 v%d, %s offset:%d" % (P_QW, vr(x + 4, 4), par * 16 * QSTR + 8 * QSTR), "qw")


def l_reduce(ri, check):
    t = P_T
    L = ["v_add_f32 v%d, v%d, v%d" % (t, t, t + 1), "v_add_f32 v%d, v%d, v%d" % (t + 2, t + 2, t + 3),
         "v_add_f32 v%d, v%d, v%d" % (t + 4, t + 4, t + 5), "v_add_f32 v%d, v%d, v%d" % (t + 6, t + 6, t + 7),
         "v_add_f32 v%d, v%d, v%d" % (t, t, t + 2), "v_add_f32 v%d, v%d, v%d" % (t + 4, t + 4, t + 6),
         "v_add_f32 v%d, v%d, v%d" % (t, t, t + 4),
         "v_rcp_f32 v%d, v%d" % (ri, t)]
    if check:
        L += ["v_cmp_nle_f32 vcc, s46, v%d" % t,
              "v_cmp_nge_f32 s[30:31], s47, v%d" % t,
              "s_nop 1",
              "s_or_b64 vcc, vcc, s[30:31]",
              "s_cmp_lg_u64 vcc, 0",
              "s_cselect_b32 s30, 1, 0",
              "s_lshl_b32 s30, s30, s33",
              "s_or_b32 s27, s27, s30",
              "s_add_u32 s33, s33, 1",
              "s_cmp_eq_u32 s33, %d" % NT,
              "s_cselect_b32 s33, 0, s33"]
    return L


def l_reads(e, par):
    la = P_LA1 if par else P_LA0
    for k in range(4):
        e.ldsop("ds_read2_b32 %s, v%d offset0:%d offset1:%d" % (vr(P_T + 2 * k, 2), la, 64 * k, 64 * k + 32), "l")


def epilogue(acc, ri):
    L = []
    for k in range(8):
        L += ["v_mul_f32 v%d, v%d, v%d" % (acc + 2 * k, acc + 2 * k, ri),
              "v_mul_f32 v%d, v%d, v%d" % (acc + 2 * k + 1, acc + 2 * k + 1, ri),
              "v_cvt_pk_bf16_f32 v%d, v%d, v%d" % (acc + k, acc + 2 * k, acc + 2 * k + 1)]
    return L


def o_store(e, acc, soff):
    nt = NTS[OPT["nt_store"]]
    e.vmop("buffer_store_dwordx4 %s, v%d, s[20:23], %s offen%s" % (vr(acc, 4), P_OA, soff, nt), "o")
    e.vmop("buffer_store_dwordx4 %s, v%d, s[20:23], %s offen offset:32%s" % (vr(acc + 4, 4), P_OA, soff, nt), "o")


def p_read(e, par, f):
    e.ldsop("ds_read_b128 %s, v%d offset:%d" % (vr(P_RING + 4 * (f & 15), 4), P_PA, PBUF[par] + f * 1024), "p%d" % f)


def tile_next(e, d, a):
    e.i("s_add_u32 %s, %s, 8192" % (d, a))
    e.i("s_sub_u32 s31, %s, %d" % (d, NT * 8192))
    e.i("s_cmp_ge_u32 %s, %d" % (d, NT * 8192))
    e.i("s_cselect_b32 %s, s31, %s" % (d, d))


def v_dma(e, ks):
    e.i("s_add_u32 m0, s39, %d" % ((ks & 15) * 1024))
    e.i("s_xor_b32 s30, s42, %d" % (ks * 4096))
    e.vmop("buffer_load_dwordx4 v%d, s[16:19], s30 offen%s lds" % (P_VG, NTS[OPT["ntv"]]), "d%d" % ks)


def v_land(e, b):
    e.wv("d%d" % (4 * b + 3))
    for ks in range(4 * b, 4 * b + 4):
        for hf in range(2):
            e.ldsop("ds_read_b64_tr_b16 %s, v%d offset:%d" % (vr(P_V + 4 * ks + 2 * hf, 2), P_TR,
                                                            (ks & 15) * 1024 + 512 * hf), "tr%d" % b)


def pv_interval(e, par, first=False, last=False):
    pp = par ^ 1
    accN, accO = P_ACC[par], P_ACC[pp]
    fill = [[] for _ in range(33)]
    if not first:
        ep = epilogue(accO, P_RI[pp])
        for k in range(8):
            fill[13 + k] += [("v", x) for x in ep[3 * k:3 * k + 3]]
        fill[22] += [("st",)]
    lr = l_reduce(P_RI[par], True)
    fill[4] += [("wl", "l")] + [("v", x) for x in lr[:4]]
    fill[5] += [("v", x) for x in lr[4:8]]
    fill[6] += [("v", x) for x in lr[8:]]
    if not last:
        fill[OPT["qw_slot"]] += [("wv", "qs%d" % pp), ("qw",)]
        fill[OPT["ql_slot"]] += [("ql",)]

    def do_fill(m):
        for it in fill[m]:
            if it[0] == "v":
                e.i(it[1])
            elif it[0] == "wl":
                e.wl(it[1])
            elif it[0] == "wv":
                e.wv(it[1])
            elif it[0] == "st":
                o_store(e, accO, "s35")
            elif it[0] == "qw":
                q_write(e, P_QS[pp], pp)
            elif it[0] == "ql":
                q_load(e, P_QS[par], "qs%d" % par, "s34")

    if OPT["pearly"]:
        reads = {m: [m] for m in range(4)}
        reads.update({4: [4, 5], 5: [6, 7], 6: [8, 9], 7: [10, 11]})
        reads.update({m: [m + 4] for m in range(8, 28)})
    else:
        reads = {m: [m] for m in range(32)}
    for m in range(32):
        if first and m in (20, 24, 28):
            v_land(e, m // 4 - 1)
        if m < 8:
            if not first:
                f = 24 + m
                e.i("%s %s, %s, %s, %s" % (MFMA, vr(accO, 16), vr(P_V + 4 * f, 4), vr(P_RING + 4 * (f & 15), 4),
                                           vr(accO, 16)))
        else:
            f = m - 8
            if first and (f & 3) == 0:
                e.wl("tr%d" % (f >> 2))
            e.wl("p%d" % f)
            e.i("%s %s, %s, %s, %s" % (MFMA, vr(accN, 16), vr(P_V + 4 * f, 4), vr(P_RING + 4 * (f & 15), 4),
                                       "0" if f == 0 else vr(accN, 16)))
        for f in reads.get(m, []):
            p_read(e, par, f)
        if m < 2:
            la = P_LA1 if par else P_LA0
            for k in (2 * m, 2 * m + 1):
                e.ldsop("ds_read2_b32 %s, v%d offset0:%d offset1:%d" % (vr(P_T + 2 * k, 2), la, 64 * k, 64 * k + 32),
                        "l")
        do_fill(m)
    if first:
        v_land(e, 7)
    tile_next(e, "s34", "s34")
    e.i("s_sub_u32 s48, s48, 1")
    e.i("s_cmp_le_i32 s48, 0")
    e.i("s_cselect_b32 s34, %d, s34" % (NT * 8192))
    tile_next(e, "s35", "s35")
    e.wl0()
    if not last:
        e.bar()


def pv_program(e):
    e.c("---- PV wave prologue")
    e.i("v_and_b32 v8, 31, v0")
    e.i("v_lshrrev_b32 v9, 5, v0")
    e.i("v_lshlrev_b32 v%d, 4, v0" % P_PA)
    e.i("v_lshlrev_b32 v10, 2, v8")
    e.i("v_add_u32 v%d, %d, v10" % (P_LA0, LBUF[0]))
    e.i("v_lshrrev_b32 v10, 3, v0")
    e.i("s_lshl_b32 s30, s25, 3")
    e.i("v_add_u32 v10, s30, v10")
    e.i("v_and_b32 v11, 7, v0")
    e.i("v_lshlrev_b32 v12, 8, v10")
    e.i("v_lshl_add_u32 v%d, v11, 4, v12" % P_QG)
    e.i("s_lshl_b32 s36, s43, 13")
    tile_next(e, "s37", "s36")
    tile_next(e, "s38", "s37")
    e.nst, e.names = 0, e.names + ["| PV:"]
    e.stamp("start")
    q_load(e, P_RING, "q0", "s36")
    q_load(e, P_RING + 8, "q1", "s37")
    q_load(e, P_RING + 16, "q2", "s38")
    e.i("v_mul_u32_u24 v12, %d, v11" % QSTR)
    e.i("v_lshl_add_u32 v12, v10, 4, v12")
    e.i("v_add_u32 v%d, %d, v12" % (P_QW, QBUF[0]))
    e.i("s_lshl_b32 s30, s25, 6")
    e.i("v_lshlrev_b32 v12, 8, v8")
    e.i("v_lshl_add_u32 v12, v9, 4, v12")
    e.i("v_add_u32 v%d, s30, v12" % P_OA)
    e.i("v_lshrrev_b32 v10, 2, v0")
    e.i("v_and_b32 v11, 3, v0")
    e.i("v_lshlrev_b32 v12, 8, v10")
    e.i("v_lshl_add_u32 v12, v11, 4, v12")
    e.i("v_add_u32 v%d, s30, v12" % P_VG)
    e.i("v_and_b32 v10, 3, v10")
    e.i("v_lshl_add_u32 v10, v9, 2, v10")
    e.i("v_lshlrev_b32 v10, 6, v10")
    e.i("v_bfe_u32 v12, v0, 4, 1")
    e.i("v_lshl_add_u32 v10, v12, 5, v10")
    e.i("v_and_b32 v12, 1, v11")
    e.i("v_lshl_add_u32 v10, v12, 4, v10")
    e.i("v_lshrrev_b32 v12, 1, v11")
    e.i("v_lshl_add_u32 v10, v12, 3, v10")
    e.i("s_lshl_b32 s39, s25, 14")
    e.i("s_add_u32 s39, s39, %d" % VST)
    e.i("v_add_u32 v%d, s39, v10" % P_TR)

    e.i("v_lshlrev_b32 v10, 2, v8")
    e.i("v_add_u32 v%d, %d, v10" % (P_LA1, LBUF[1]))

    e.i("s_mov_b32 s27, 0")
    e.i("s_mov_b32 s33, s43")
    e.i("s_sub_u32 s35, s36, 8192")
    tile_next(e, "s28", "s38")
    tile_next(e, "s34", "s28")
    e.i("s_mov_b32 s48, %d" % (NT - 4))
    if OPT["prio_pv"]:
        e.i("s_setprio %d" % OPT["prio_pv"])
    if OPT["vdma_early"]:
        for ks in range(16):
            v_dma(e, ks)
    for k, tag in enumerate(("q0", "q1")):
        e.wv(tag)
        e.stamp(tag + " landed")
        q_write(e, P_RING + 8 * k, k)
    e.wl0()
    e.bar()
    e.stamp("P1 out")
    if not OPT["vdma_early"]:
        for ks in range(16):
            v_dma(e, ks)
    e.stamp("v1 issued")
    e.bar()
    e.stamp("B-1 out")
    e.wv("q2")
    q_write(e, P_RING + 16, 0)
    q_load(e, P_QS[1], "qs1", "s28")
    for b in range(4):
        v_land(e, b)
        e.wl0()
        e.stamp("v batch %d" % b)
        for ks in range(4 * b + 16, 4 * b + 20):
            v_dma(e, ks)
    e.wl0()
    e.bar()
    e.stamp("B0 out")
    pv_interval(e, 0, first=True)
    e.stamp("B1 out")
    st = (list(e.lds), list(e.vm))
    e.i("s_mov_b32 s26, 8")
    e.lab("L_pv_loop")
    e.role = "pv"
    pv_interval(e, 1)
    pv_interval(e, 0)
    e.i("s_sub_u32 s26, s26, 1")
    e.i("s_cmp_lg_u32 s26, 0")
    e.i("s_cbranch_scc1 L_pv_loop")
    e.role = None
    assert (e.lds, e.vm[-6:]) == (st[0], e.vm[-6:]), (e.lds, e.vm, st)
    pv_interval(e, 1, last=True)
    acc = P_ACC[1]
    for f in range(24, 32):
        e.i("%s %s, %s, %s, %s" % (MFMA, vr(acc, 16), vr(P_V + 4 * f, 4), vr(P_RING + 4 * (f & 15), 4), vr(acc, 16)))
    e.i("s_nop 7")
    e.i("s_nop 7")
    for x in epilogue(acc, P_RI[1]):
        e.i(x)
    o_store(e, acc, "s35")
    e.i("v_mov_b32 v8, %d" % FLAG)
    e.i("v_mov_b32 v9, s27")
    e.i("ds_write_b32 v8, v9")
    e.i("s_waitcnt lgkmcnt(0)")


def pv_fallback(e):
    e.i("buffer_load_dwordx4 %s, v%d, s[12:15], s45 offen" % (vr(16, 4), P_QG))
    e.i("buffer_load_dwordx4 %s, v%d, s[12:15], s45 offen offset:128" % (vr(20, 4), P_QG))
    e.i("s_waitcnt vmcnt(0)")
    e.i("ds_write_b128 v%d, %s" % (P_QW, vr(16, 4)))
    e.i("ds_write_b128 v%d, %s offset:%d" % (P_QW, vr(20, 4), 8 * QSTR))
    e.i("s_waitcnt lgkmcnt(0)")
    e.bar()
    e.bar()
    e.bar()
    for k in range(4):
        e.i("ds_read2_b32 %s, v%d offset0:%d offset1:%d" % (vr(P_T + 2 * k, 2), P_LA0, 64 * k, 64 * k + 32))
    e.i("s_waitcnt lgkmcnt(0)")
    for x in l_reduce(P_RI[0], False):
        e.i(x)
    acc = P_ACC[0]
    for b in range(4):
        for k in range(8):
            e.i("ds_read_b128 %s, v%d offset:%d" % (vr(P_RING + 4 * k, 4), P_PA, (8 * b + k) * 1024))
        e.i("s_waitcnt lgkmcnt(0)")
        for k in range(8):
            f = 8 * b + k
            e.i("%s %s, %s, %s, %s" % (MFMA, vr(acc, 16), vr(P_V + 4 * f, 4), vr(P_RING + 4 * k, 4),
                                       "0" if f == 0 else vr(acc, 16)))
        e.i("s_nop 7")
    e.i("s_nop 7")
    e.i("s_nop 7")
    for x in epilogue(acc, P_RI[0]):
        e.i(x)
    e.i("buffer_store_dwordx4 %s, v%d, s[20:23], s45 offen" % (vr(acc, 4), P_OA))
    e.i("buffer_store_dwordx4 %s, v%d, s[20:23], s45 offen offset:32" % (vr(acc + 4, 4), P_OA))
    e.i("s_waitcnt vmcnt(0)")


def main():
    win = OPT["win"]
    lo, hi = f2u(2.0 ** -win), f2u(2.0 ** win)
    if OPT["force_fb"]:
        hi = f2u(2.0 ** -30)

    e = E()
    h = e.lines
    hdr = open("cdna_kernels/%s.s.ref" % NAME).read().split("\n")
    for ln in hdr:
        if ln.startswith("; @launch"):
            h.append("; @launch grid=(256,1,1) block=(512,1,1) lds=%d" % LDS_BYTES)
        elif ln.startswith(";"):
            h.append(ln)
        else:
            break
    h.append('.amdgcn_target "amdgcn-amd-amdhsa--gfx950"')
    h.append(".text")
    h.append(".globl %s_kernel" % NAME)
    h.append(".p2align 8")
    h.append(".type %s_kernel,@function" % NAME)
    h.append("%s_kernel:" % NAME)
    e.i("s_cmp_ge_u32 s2, 256")
    e.i("s_cbranch_scc1 L_end")
    if OPT["stamps"]:
        e.i("s_memrealtime s[98:99]")
        e.i("s_memtime s[96:97]")
        e.i("s_mov_b32 s49, 0")
    e.i("s_load_dwordx4 s[4:7], s[0:1], 0")
    e.i("s_load_dwordx4 s[8:11], s[0:1], 16")
    e.i("v_lshrrev_b32 v1, 6, v0")
    e.i("v_and_b32 v0, 63, v0")
    e.c("group g = (wg>>4)*8 + (wg&7), half = (wg>>3)&1: both halves of a kv head land on one XCD")
    e.i("s_lshr_b32 s3, s2, 4")
    e.i("s_lshl_b32 s3, s3, 3")
    e.i("s_and_b32 s30, s2, 7")
    e.i("s_add_u32 s3, s3, s30")
    e.i("v_readfirstlane_b32 s24, v1")
    e.i("s_bfe_u32 s30, s2, 0x10003")
    e.i("s_lshl_b32 s31, s3, 1")
    e.i("s_add_u32 s31, s31, s30")
    e.i("s_mul_i32 s31, s31, %d" % (576 * 256))
    e.i("s_lshl_b32 s32, s3, 17")
    e.i("s_and_b32 s25, s24, 3")
    e.c("key-block permutation (s42, xor mask on byte offsets) and rotation of the q tile order (s43, tile index)")
    e.i("s_and_b32 s42, s3, %d" % OPT["rotk"])
    e.i("s_lshl_b32 s42, s42, 13")
    if OPT["split"]:
        e.i("s_mul_i32 s43, s30, %d" % (10 * 8192))
        e.i("s_xor_b32 s42, s42, s43")
    e.i("s_and_b32 s43, s3, %d" % OPT["rotq"])
    e.i("s_mov_b32 s29, 0x%08x" % f2u(1.4426950408889634 / (128.0 ** 0.5)))
    e.i("s_mov_b32 s46, 0x%08x" % lo)
    e.i("s_mov_b32 s47, 0x%08x" % hi)
    e.i("s_waitcnt lgkmcnt(0)")
    e.i("s_add_u32 s12, s4, s31")
    e.i("s_addc_u32 s13, s5, 0")
    e.i("s_mov_b32 s14, %d" % (576 * 256))
    e.i("s_mov_b32 s15, 0x00020000")
    e.i("s_add_u32 s20, s10, s31")
    e.i("s_addc_u32 s21, s11, 0")
    e.i("s_mov_b32 s22, %d" % (576 * 256))
    e.i("s_mov_b32 s23, 0x00020000")
    e.i("s_mov_b32 s18, 131072")
    e.i("s_mov_b32 s19, 0x00020000")
    e.i("s_cmp_ge_u32 s24, 4")
    e.i("s_cbranch_scc1 L_pv")
    e.i("s_add_u32 s16, s6, s32")
    e.i("s_addc_u32 s17, s7, 0")
    qk_program(e)
    e.i("s_branch L_join")
    e.lab("L_pv")
    e.lds, e.vm = [], []
    e.i("s_add_u32 s16, s8, s32")
    e.i("s_addc_u32 s17, s9, 0")
    pv_program(e)
    e.lab("L_join")
    e.c("---- tiles whose row sums left the safe window are redone with the true row max")
    e.bar()
    e.i("v_mov_b32 v8, %d" % FLAG)
    e.i("ds_read_b32 v9, v8")
    e.i("s_waitcnt lgkmcnt(0)")
    e.i("v_readfirstlane_b32 s27, v9")
    e.i("s_nop 3")
    e.i("s_cmp_eq_u32 s27, 0")
    e.i("s_cbranch_scc1 L_done")
    e.i("s_waitcnt vmcnt(0)")
    e.i("s_mov_b32 s44, 0")
    e.lab("L_fb_loop")
    e.i("s_lshr_b32 s30, s27, s44")
    e.i("s_and_b32 s30, s30, 1")
    e.i("s_cmp_eq_u32 s30, 0")
    e.i("s_cbranch_scc1 L_fb_next")
    e.i("s_lshl_b32 s45, s44, 13")
    e.i("s_cmp_ge_u32 s24, 4")
    e.i("s_cbranch_scc1 L_fb_pv")
    qk_fallback(e)
    e.i("s_branch L_fb_next")
    e.lab("L_fb_pv")
    pv_fallback(e)
    e.lab("L_fb_next")
    e.i("s_add_u32 s44, s44, 1")
    e.i("s_cmp_lt_u32 s44, %d" % NT)
    e.i("s_cbranch_scc1 L_fb_loop")
    e.lab("L_done")
    e.i("s_waitcnt vmcnt(0)")
    if OPT["stamps"]:
        e.i("s_memtime s[50:51]")
        e.i("s_memrealtime s[100:101]")
        e.i("s_load_dwordx2 s[4:5], s[0:1], 40")
        e.i("s_waitcnt lgkmcnt(0)")
        if OPT["stamps"] == 2:
            e.i("s_mov_b32 s96, 0")
        e.i("s_mov_b32 s94, s96")
        e.i("s_mov_b32 s95, s50")
        e.i("s_lshl_b32 s30, s2, 3")
        e.i("s_add_u32 s30, s30, s24")
        e.i("s_lshl_b32 s30, s30, 8")
        e.i("s_mov_b64 exec, 1")
        e.i("v_mov_b32 v8, s30")
        for k in range(44):
            e.i("v_mov_b32 v9, s%d" % (52 + k))
            e.i("global_store_dword v8, v9, s[4:5] offset:%d" % (4 * k))
        e.i("v_mov_b32 v9, s98")
        e.i("global_store_dword v8, v9, s[4:5] offset:%d" % (4 * 60))
        e.i("v_mov_b32 v9, s100")
        e.i("global_store_dword v8, v9, s[4:5] offset:%d" % (4 * 61))
        e.i("s_waitcnt vmcnt(0)")
    e.lab("L_end")
    e.i("s_endpgm")
    h.append('.section .rodata,"a"')
    h.append(".p2align 6")
    h.append(".amdhsa_kernel %s_kernel" % NAME)
    for x in ("next_free_vgpr 256", "next_free_sgpr %d" % (102 if OPT["stamps"] else 64), "accum_offset 256", "group_segment_fixed_size 0",
              "kernarg_size 48", "user_sgpr_count 2", "user_sgpr_kernarg_segment_ptr 1",
              "system_sgpr_workgroup_id_x 1"):
        h.append("  .amdhsa_" + x)
    h.append(".end_amdhsa_kernel")
    open(OUT, "w").write("\n".join(h) + "\n")
    if e.names:
        print(", ".join(e.names))


main()
```

```python
import struct
import sys

NAME = "standalone__gqa_softmax__near_ridge"
NT = 18

PBUF = [0, 32768]
VST = 65536
QSTR = 528
QBUF = [131072, 131072 + 16 * QSTR]
LBUF = [147968, 147968 + 1024]
FLAG = 150016
MAXB = 150272
LDS_BYTES = 151296

OPT = dict(prio_qk=1, prio_pv=0, vdma_early=0, bar_slot=12, rotk=0, rotq=0, split=0, dbg=0, todbg=0, dyn=0, dynpv=0, pearly=1, ntq=1, ntk=1, ntv=1, qw_slot=24, ql_slot=1, win=40, force_fb=0, nt_store=1, stamps=0)
for a in sys.argv[1:]:
    if "=" in a:
        k, v = a.split("=")
        if k in OPT:
            OPT[k] = int(v)
NTS = ["", " nt", " sc1", " sc1 nt", " sc0 sc1", " sc0 sc1 nt", " sc0", " sc0 nt"]
OUT = [a for a in sys.argv[1:] if "=" not in a]
OUT = OUT[0] if OUT else "cdna_kernels/%s.s" % NAME


def f2u(x):
    return struct.unpack("<I", struct.pack("<f", x))[0]


class E:
    def __init__(s):
        s.lines = []
        s.lds = []
        s.vm = []
        s.nst = 0
        s.role = None
        s.names = []

    def i(s, t):
        d = OPT["dbg"]
        if d and s.role:
            if s.role == "pv" and d & 1 and t.startswith("v_mfma"):
                return
            if s.role == "qk" and d & 2 and t.startswith("v_mfma"):
                return
            if s.role == "qk" and d & 4 and t.split()[0] in ("v_exp_f32", "v_add_f32", "v_cvt_pk_bf16_f32"):
                return
            if s.role == "pv" and d & 8 and t.startswith("ds_read_b128"):
                return
            if s.role == "pv" and d & 16 and t.startswith("buffer_"):
                return
            if s.role == "qk" and d & 32 and t.startswith("v_exp"):
                return
            if s.role == "qk" and d & 64 and t.startswith("ds_write"):
                return
            if s.role == "qk" and d & 128 and t.startswith("v_add_f32"):
                return
        s.lines.append("    " + t)

    def c(s, t):
        s.lines.append("    ; " + t)

    def lab(s, t):
        s.lines.append(t + ":")

    def ldsop(s, t, tag):
        s.i(t)
        s.lds.append(tag)

    def vmop(s, t, tag):
        s.i(t)
        s.vm.append(tag)

    def wl(s, tag):
        if tag not in s.lds:
            return
        idx = len(s.lds) - 1 - s.lds[::-1].index(tag)
        n = min(len(s.lds) - 1 - idx, 15)
        s.i("s_waitcnt lgkmcnt(%d)" % n)
        s.lds = s.lds[len(s.lds) - n:] if n else []

    def wv(s, tag):
        if tag not in s.vm:
            return
        idx = len(s.vm) - 1 - s.vm[::-1].index(tag)
        n = min(len(s.vm) - 1 - idx, 63)
        s.i("s_waitcnt vmcnt(%d)" % n)
        s.vm = s.vm[len(s.vm) - n:] if n else []

    def wl0(s):
        s.i("s_waitcnt lgkmcnt(0)")
        s.lds = []

    def stamp(s, name):
        if OPT["stamps"] == 2:
            s.i("s_memtime s[50:51]")
            s.i("s_waitcnt lgkmcnt(0)")
            s.lds = []
            s.i("s_mov_b32 s%d, s50" % (52 + s.nst))
            s.nst += 1
            s.names.append(name)

    def bar(s):
        if OPT["stamps"] == 1:
            s.i("s_memtime s[50:51]")
            s.i("s_waitcnt lgkmcnt(0)")
            s.lds = []
            s.i("s_mov_b32 m0, s49")
            s.i("s_nop 0")
            s.i("s_movreld_b32 s52, s96")
            s.i("s_movreld_b32 s53, s50")
            s.i("s_add_u32 s49, s49, 2")
            s.i("s_barrier")
            s.i("s_memtime s[96:97]")
        else:
            s.i("s_barrier")

    def wv0(s):
        s.i("s_waitcnt vmcnt(0)")
        s.vm = []


def vr(a, n=1):
    return "v%d" % a if n == 1 else "v[%d:%d]" % (a, a + n - 1)


MFMA = "v_mfma_f32_32x32x16_bf16"

Q_QA, Q_PA, Q_LA = 1, 2, 3
Q_L0, Q_L1 = 4, 5
Q_T = 6
Q_PK = [16, 24]
Q_QF = 32
Q_S = 64
Q_K = 128


def kf(j, s):
    return Q_K + (j * 8 + s) * 4


def sm_groups(j, ppar, set_, first_of_tile, last_of_tile):
    gs = []
    pk = Q_PK[set_]
    for g in range(8):
        a = Q_S + 16 * j + 2 * g
        L = [("v", "v_exp_f32 v%d, v%d" % (a, a)), ("v", "v_exp_f32 v%d, v%d" % (a + 1, a + 1))]
        if first_of_tile and g == 0:
            L += [("v", "v_mov_b32 v%d, v%d" % (Q_L0, a)), ("v", "v_mov_b32 v%d, v%d" % (Q_L1, a + 1))]
        else:
            L += [("v", "v_add_f32 v%d, v%d, v%d" % (Q_L0, Q_L0, a)),
                  ("v", "v_add_f32 v%d, v%d, v%d" % (Q_L1, Q_L1, a + 1))]
        L += [("v", "v_cvt_pk_bf16_f32 v%d, v%d, v%d" % (pk + g, a, a + 1))]
        if g == 3 or g == 7:
            u = g >> 2
            off = PBUF[ppar] + (2 * j + u) * 1024
            L += [("l", "ds_write_b128 v%d, %s offset:%d" % (Q_PA, vr(pk + 4 * u, 4), off), "pw")]
        if last_of_tile and g == 7:
            L += [("v", "v_add_f32 v%d, v%d, v%d" % (Q_T, Q_L0, Q_L1)),
                  ("l", "ds_write_b32 v%d, v%d offset:%d" % (Q_LA, Q_T, ppar * 1024), "lw")]
        gs.append(L)
    return gs


def emit_list(e, L):
    for it in L:
        if it[0] == "l":
            e.ldsop(it[1], it[2])
        else:
            e.i(it[1])


def k_dma(e, j):
    for hf in range(2):
        e.i("s_add_u32 m0, s41, %d" % (PBUF[j & 1] + hf * 4096))
        e.i("s_add_u32 s30, s40, %d" % (j * 8192))
        e.i("s_xor_b32 s30, s30, s42")
        if hf:
            e.i("s_add_u32 s30, s30, 4096")
        for i in range(4):
            e.vmop("buffer_load_dwordx4 v%d, s[16:19], s30 offen offset:%d%s lds" % (16 + i, i * 1024, NTS[OPT["ntk"]]), "k%d" % j)


def k_read(e, j):
    e.wv("k%d" % j)
    for s in range(8):
        e.ldsop("ds_read_b128 %s, v%d offset:%d" % (vr(kf(j, s), 4), 8 + s, PBUF[j & 1]), "kr%d" % j)


def k_scale(e, j):
    if j >= 2:
        e.wl("kr%d" % j)
    for r in range(kf(j, 0), kf(j, 0) + 32):
        e.i("v_lshlrev_b32 v6, 16, v%d" % r)
        e.i("v_and_b32 v7, 0xffff0000, v%d" % r)
        e.i("v_mul_f32 v6, s29, v6")
        e.i("v_mul_f32 v7, s29, v7")
        e.i("v_cvt_pk_bf16_f32 v%d, v6, v7" % r)


def qk_iter(e, par, first=False, last=False):
    pp = par ^ 1
    fill = [[] for _ in range(32)]
    if not first:
        g2 = sm_groups(2, pp, 0, False, False)
        fill[0] += g2[6]
        fill[1] += g2[7]
        g3 = sm_groups(3, pp, 1, False, True)
        for k in range(8):
            fill[2 + k] += g3[k]
    g0 = sm_groups(0, par, 0, True, False)
    g1 = sm_groups(1, par, 1, False, False)
    g2 = sm_groups(2, par, 0, False, False)
    for k in range(8):
        fill[10 + k] += g0[k]
        fill[18 + k] += g1[k]
    for k in range(6):
        fill[26 + k] += g2[k]
    for m in range(32):
        j, s = m >> 3, m & 7
        if m == OPT["bar_slot"]:
            e.wl0()
            e.bar()
        if first and m == 10:
            e.stamp("B-1 out")
            k_read(e, 2)
            e.stamp("k2 landed")
        if first and m == 16:
            k_scale(e, 2)
            e.stamp("k2 scaled")
            k_read(e, 3)
            e.stamp("k3 landed")
        if first and m == 24:
            k_scale(e, 3)
            e.stamp("k3 scaled")
        if j == 0:
            e.wl("q%d" % s)
        d = vr(Q_S + 16 * j, 16)
        if OPT["dyn"] and not first:
            e.i("s_setprio %d" % OPT["dyn"])
        e.i("%s %s, %s, %s, %s" % (MFMA, d, vr(kf(j, s), 4), vr(Q_QF + 4 * s, 4), "0" if s == 0 else d))
        if OPT["dyn"] and not first:
            e.i("s_setprio %d" % OPT["prio_qk"])
        if j == 3 and not last:
            e.ldsop("ds_read_b128 %s, v%d offset:%d" % (vr(Q_QF + 4 * s, 4), Q_QA, pp * 16 * QSTR + s * 2 * QSTR),
                    "q%d" % s)
        if first and m in (7, 8, 9) :
            e.i("s_nop 7")
        emit_list(e, fill[m])


def qk_tail(e, par):
    g2 = sm_groups(2, par, 0, False, False)
    emit_list(e, g2[6])
    emit_list(e, g2[7])
    e.i("s_nop 7")
    e.i("s_nop 3")
    for g in sm_groups(3, par, 1, False, True):
        emit_list(e, g)
    e.wl0()
    e.bar()


def qk_program(e):
    e.c("---- QK wave prologue")
    e.i("v_and_b32 v6, 31, v0")
    e.i("v_lshrrev_b32 v7, 5, v0")
    e.i("s_lshl_b32 s40, s25, 15")
    e.i("s_lshl_b32 s41, s25, 13")
    e.c("DMA source: row r = lane>>4, slot = lane&15 holds chunk slot ^ (key&15)")
    e.i("v_lshrrev_b32 v8, 4, v0")
    e.i("v_and_b32 v9, 15, v0")
    e.i("v_xor_b32 v9, v9, v8")
    e.i("v_lshlrev_b32 v9, 4, v9")
    e.i("v_lshl_add_u32 v16, v8, 8, v9")
    for i in range(1, 4):
        e.i("v_xor_b32 v%d, %d, v16" % (16 + i, i << 6))
    e.stamp("start")
    k_dma(e, 0)
    k_dma(e, 1)
    e.stamp("k01 issued")
    e.c("fragment read address of step s: key*256 + ((2s+h) ^ (key&15))*16")
    e.i("v_and_b32 v9, 15, v6")
    e.i("v_xor_b32 v9, v9, v7")
    e.i("v_lshlrev_b32 v9, 4, v9")
    e.i("v_lshl_add_u32 v9, v6, 8, v9")
    e.i("v_add_u32 v8, s41, v9")
    e.i("v_mul_u32_u24 v20, %d, v7" % QSTR)
    e.i("v_lshl_add_u32 v20, v6, 4, v20")
    e.i("v_add_u32 v%d, %d, v20" % (Q_QA, QBUF[0]))
    e.i("v_lshlrev_b32 v20, 4, v0")
    e.i("v_add_u32 v%d, s41, v20" % Q_PA)
    e.i("s_lshl_b32 s30, s25, 8")
    e.i("s_add_u32 s30, s30, %d" % LBUF[0])
    e.i("v_lshlrev_b32 v20, 2, v0")
    e.i("v_add_u32 v%d, s30, v20" % Q_LA)
    for k in range(1, 8):
        e.i("v_xor_b32 v%d, %d, v8" % (8 + k, k << 5))
    k_read(e, 0)
    e.wl0()
    e.stamp("k0 read")
    k_dma(e, 2)
    k_scale(e, 0)
    e.stamp("k0 scaled")
    k_read(e, 1)
    e.wl0()
    e.stamp("k1 read")
    k_dma(e, 3)
    e.stamp("k3 issued")
    if OPT["prio_qk"]:
        e.i("s_setprio %d" % OPT["prio_qk"])
    e.bar()
    for s in range(8):
        e.ldsop("ds_read_b128 %s, v%d offset:%d" % (vr(Q_QF + 4 * s, 4), Q_QA, s * 2 * QSTR), "q%d" % s)
    e.stamp("P1 out")
    k_scale(e, 1)
    e.stamp("k1 scaled")
    qk_iter(e, 0, first=True)
    st = list(e.lds)
    e.i("s_mov_b32 s26, 8")
    e.lab("L_qk_loop")
    e.role = "qk"
    qk_iter(e, 1)
    qk_iter(e, 0)
    n = min(len(e.lds), len(st))
    assert e.lds[-n:] == st[-n:], (e.lds, st)
    e.i("s_sub_u32 s26, s26, 1")
    e.i("s_cmp_lg_u32 s26, 0")
    e.i("s_cbranch_scc1 L_qk_loop")
    e.role = None
    qk_iter(e, 1, last=True)
    qk_tail(e, 1)


def qk_fallback(e):
    e.bar()
    for s in range(8):
        e.i("ds_read_b128 %s, v%d offset:%d" % (vr(Q_QF + 4 * s, 4), Q_QA, s * 2 * QSTR))
    e.i("s_waitcnt lgkmcnt(0)")
    for j in range(4):
        for s in range(8):
            d = vr(Q_S + 16 * j, 16)
            e.i("%s %s, %s, %s, %s" % (MFMA, d, vr(kf(j, s), 4), vr(Q_QF + 4 * s, 4), "0" if s == 0 else d))
    e.i("s_nop 7")
    e.i("s_nop 7")
    e.i("v_max_f32 v6, v%d, v%d" % (Q_S, Q_S + 1))
    for k in range(1, 32):
        e.i("v_max3_f32 v6, v6, v%d, v%d" % (Q_S + 2 * k, Q_S + 2 * k + 1))
    e.i("v_mov_b32 v7, v6")
    e.i("s_nop 1")
    e.i("v_permlane32_swap_b32 v6, v7")
    e.i("s_nop 1")
    e.i("v_max_f32 v6, v6, v7")
    e.i("v_lshlrev_b32 v8, 2, v0")
    e.i("v_add_u32 v8, %d, v8" % MAXB)
    e.i("s_lshl_b32 s30, s25, 8")
    e.i("v_add_u32 v9, s30, v8")
    e.i("ds_write_b32 v9, v6")
    e.i("s_waitcnt lgkmcnt(0)")
    e.bar()
    for k in range(4):
        e.i("ds_read_b32 v%d, v8 offset:%d" % (10 + k, 256 * k))
    e.i("s_waitcnt lgkmcnt(0)")
    e.i("v_max3_f32 v6, v10, v11, v12")
    e.i("v_max_f32 v6, v6, v13")
    for k in range(64):
        e.i("v_sub_f32 v%d, v%d, v6" % (Q_S + k, Q_S + k))
    for j in range(4):
        for g in sm_groups(j, 0, j & 1, j == 0, j == 3):
            for it in g:
                e.i(it[1])
    e.i("s_waitcnt lgkmcnt(0)")
    e.bar()


P_PA, P_LA0, P_QG, P_QW, P_OA = 1, 2, 3, 4, 5
P_RI = [6, 7]
P_T = 8
P_TR, P_LA1, P_VG = 48, 0, 49
P_QS = [16, 24]
P_ACC = [32, 48]
P_RING = 64
P_V = 128


def q_scale(x, n):
    L = []
    for k in range(n):
        t = P_T + 2 * (k & 1)
        L += ["v_lshlrev_b32 v%d, 16, v%d" % (t, x + k),
              "v_and_b32 v%d, 0xffff0000, v%d" % (t + 1, x + k),
              "v_mul_f32 v%d, s29, v%d" % (t, t),
              "v_mul_f32 v%d, s29, v%d" % (t + 1, t + 1),
              "v_cvt_pk_bf16_f32 v%d, v%d, v%d" % (x + k, t, t + 1)]
    return L


def q_load(e, x, tag, soff):
    nt = NTS[OPT["ntq"]]
    e.vmop("buffer_load_dwordx4 %s, v%d, s[12:15], %s offen%s" % (vr(x, 4), P_QG, soff, nt), tag)
    e.vmop("buffer_load_dwordx4 %s, v%d, s[12:15], %s offen offset:128%s" % (vr(x + 4, 4), P_QG, soff, nt), tag)


def q_write(e, x, par):
    e.ldsop("ds_write_b128 v%d, %s offset:%d" % (P_QW, vr(x, 4), par * 16 * QSTR), "qw")
    e.ldsop("ds_write_b128 v%d, %s offset:%d" % (P_QW, vr(x + 4, 4), par * 16 * QSTR + 8 * QSTR), "qw")


def l_reduce(ri, check):
    t = P_T
    L = ["v_add_f32 v%d, v%d, v%d" % (t, t, t + 1), "v_add_f32 v%d, v%d, v%d" % (t + 2, t + 2, t + 3),
         "v_add_f32 v%d, v%d, v%d" % (t + 4, t + 4, t + 5), "v_add_f32 v%d, v%d, v%d" % (t + 6, t + 6, t + 7),
         "v_add_f32 v%d, v%d, v%d" % (t, t, t + 2), "v_add_f32 v%d, v%d, v%d" % (t + 4, t + 4, t + 6),
         "v_add_f32 v%d, v%d, v%d" % (t, t, t + 4),
         "v_rcp_f32 v%d, v%d" % (ri, t)]
    if check:
        L += ["v_cmp_nle_f32 vcc, s46, v%d" % t,
              "v_cmp_nge_f32 s[30:31], s47, v%d" % t,
              "s_nop 1",
              "s_or_b64 vcc, vcc, s[30:31]",
              "s_cmp_lg_u64 vcc, 0",
              "s_cselect_b32 s30, 1, 0",
              "s_lshl_b32 s30, s30, s33",
              "s_or_b32 s27, s27, s30",
              "s_add_u32 s33, s33, 1",
              "s_cmp_eq_u32 s33, %d" % NT,
              "s_cselect_b32 s33, 0, s33"]
    return L


def l_reads(e, par):
    la = P_LA1 if par else P_LA0
    for k in range(4):
        e.ldsop("ds_read2_b32 %s, v%d offset0:%d offset1:%d" % (vr(P_T + 2 * k, 2), la, 64 * k, 64 * k + 32), "l")


def epilogue(acc, ri):
    L = []
    for k in range(8):
        L += ["v_mul_f32 v%d, v%d, v%d" % (acc + 2 * k, acc + 2 * k, ri),
              "v_mul_f32 v%d, v%d, v%d" % (acc + 2 * k + 1, acc + 2 * k + 1, ri),
              "v_cvt_pk_bf16_f32 v%d, v%d, v%d" % (acc + k, acc + 2 * k, acc + 2 * k + 1)]
    return L


def o_store(e, acc, soff):
    nt = NTS[OPT["nt_store"]]
    e.vmop("buffer_store_dwordx4 %s, v%d, s[20:23], %s offen%s" % (vr(acc, 4), P_OA, soff, nt), "o")
    e.vmop("buffer_store_dwordx4 %s, v%d, s[20:23], %s offen offset:32%s" % (vr(acc + 4, 4), P_OA, soff, nt), "o")


def p_read(e, par, f):
    e.ldsop("ds_read_b128 %s, v%d offset:%d" % (vr(P_RING + 4 * (f & 15), 4), P_PA, PBUF[par] + f * 1024), "p%d" % f)


def tile_next(e, d, a):
    e.i("s_add_u32 %s, %s, 8192" % (d, a))
    e.i("s_sub_u32 s31, %s, %d" % (d, NT * 8192))
    e.i("s_cmp_ge_u32 %s, %d" % (d, NT * 8192))
    e.i("s_cselect_b32 %s, s31, %s" % (d, d))


def v_dma(e, ks):
    e.i("s_add_u32 m0, s39, %d" % ((ks & 15) * 1024))
    e.i("s_xor_b32 s30, s42, %d" % (ks * 4096))
    e.vmop("buffer_load_dwordx4 v%d, s[16:19], s30 offen%s lds" % (P_VG, NTS[OPT["ntv"]]), "d%d" % ks)


def v_land(e, b):
    e.wv("d%d" % (4 * b + 3))
    for ks in range(4 * b, 4 * b + 4):
        for hf in range(2):
            e.ldsop("ds_read_b64_tr_b16 %s, v%d offset:%d" % (vr(P_V + 4 * ks + 2 * hf, 2), P_TR,
                                                            (ks & 15) * 1024 + 512 * hf), "tr%d" % b)


def pv_interval(e, par, first=False, last=False):
    pp = par ^ 1
    accN, accO = P_ACC[par], P_ACC[pp]
    fill = [[] for _ in range(33)]
    if not first:
        ep = epilogue(accO, P_RI[pp])
        for k in range(8):
            fill[13 + k] += [("v", x) for x in ep[3 * k:3 * k + 3]]
        fill[22] += [("st",)]
    lr = l_reduce(P_RI[par], True)
    fill[4] += [("wl", "l")] + [("v", x) for x in lr[:4]]
    fill[5] += [("v", x) for x in lr[4:8]]
    fill[6] += [("v", x) for x in lr[8:]]
    if not last:
        fill[OPT["qw_slot"]] += [("wv", "qs%d" % pp), ("qw",)]
        fill[OPT["ql_slot"]] += [("ql",)]

    def do_fill(m):
        for it in fill[m]:
            if it[0] == "v":
                e.i(it[1])
            elif it[0] == "wl":
                e.wl(it[1])
            elif it[0] == "wv":
                e.wv(it[1])
            elif it[0] == "st":
                o_store(e, accO, "s35")
            elif it[0] == "qw":
                q_write(e, P_QS[pp], pp)
            elif it[0] == "ql":
                q_load(e, P_QS[par], "qs%d" % par, "s34")

    if OPT["pearly"]:
        reads = {m: [m] for m in range(4)}
        reads.update({4: [4, 5], 5: [6, 7], 6: [8, 9], 7: [10, 11]})
        reads.update({m: [m + 4] for m in range(8, 28)})
    else:
        reads = {m: [m] for m in range(32)}
    for m in range(32):
        if first and m in (20, 24, 28):
            v_land(e, m // 4 - 1)
        if m < 8:
            if not first:
                f = 24 + m
                e.i("%s %s, %s, %s, %s" % (MFMA, vr(accO, 16), vr(P_V + 4 * f, 4), vr(P_RING + 4 * (f & 15), 4),
                                           vr(accO, 16)))
        else:
            f = m - 8
            if first and (f & 3) == 0:
                e.wl("tr%d" % (f >> 2))
            e.wl("p%d" % f)
            e.i("%s %s, %s, %s, %s" % (MFMA, vr(accN, 16), vr(P_V + 4 * f, 4), vr(P_RING + 4 * (f & 15), 4),
                                       "0" if f == 0 else vr(accN, 16)))
        for f in reads.get(m, []):
            p_read(e, par, f)
        if m < 2:
            la = P_LA1 if par else P_LA0
            for k in (2 * m, 2 * m + 1):
                e.ldsop("ds_read2_b32 %s, v%d offset0:%d offset1:%d" % (vr(P_T + 2 * k, 2), la, 64 * k, 64 * k + 32),
                        "l")
        do_fill(m)
    if first:
        v_land(e, 7)
    tile_next(e, "s34", "s34")
    e.i("s_sub_u32 s48, s48, 1")
    e.i("s_cmp_le_i32 s48, 0")
    e.i("s_cselect_b32 s34, %d, s34" % (NT * 8192))
    tile_next(e, "s35", "s35")
    e.wl0()
    if not last:
        e.bar()


def pv_program(e):
    e.c("---- PV wave prologue")
    e.i("v_and_b32 v8, 31, v0")
    e.i("v_lshrrev_b32 v9, 5, v0")
    e.i("v_lshlrev_b32 v%d, 4, v0" % P_PA)
    e.i("v_lshlrev_b32 v10, 2, v8")
    e.i("v_add_u32 v%d, %d, v10" % (P_LA0, LBUF[0]))
    e.i("v_lshrrev_b32 v10, 3, v0")
    e.i("s_lshl_b32 s30, s25, 3")
    e.i("v_add_u32 v10, s30, v10")
    e.i("v_and_b32 v11, 7, v0")
    e.i("v_lshlrev_b32 v12, 8, v10")
    e.i("v_lshl_add_u32 v%d, v11, 4, v12" % P_QG)
    e.i("s_lshl_b32 s36, s43, 13")
    tile_next(e, "s37", "s36")
    tile_next(e, "s38", "s37")
    e.nst, e.names = 0, e.names + ["| PV:"]
    e.stamp("start")
    q_load(e, P_RING, "q0", "s36")
    q_load(e, P_RING + 8, "q1", "s37")
    q_load(e, P_RING + 16, "q2", "s38")
    e.i("v_mul_u32_u24 v12, %d, v11" % QSTR)
    e.i("v_lshl_add_u32 v12, v10, 4, v12")
    e.i("v_add_u32 v%d, %d, v12" % (P_QW, QBUF[0]))
    e.i("s_lshl_b32 s30, s25, 6")
    e.i("v_lshlrev_b32 v12, 8, v8")
    e.i("v_lshl_add_u32 v12, v9, 4, v12")
    e.i("v_add_u32 v%d, s30, v12" % P_OA)
    e.i("v_lshrrev_b32 v10, 2, v0")
    e.i("v_and_b32 v11, 3, v0")
    e.i("v_lshlrev_b32 v12, 8, v10")
    e.i("v_lshl_add_u32 v12, v11, 4, v12")
    e.i("v_add_u32 v%d, s30, v12" % P_VG)
    e.i("v_and_b32 v10, 3, v10")
    e.i("v_lshl_add_u32 v10, v9, 2, v10")
    e.i("v_lshlrev_b32 v10, 6, v10")
    e.i("v_bfe_u32 v12, v0, 4, 1")
    e.i("v_lshl_add_u32 v10, v12, 5, v10")
    e.i("v_and_b32 v12, 1, v11")
    e.i("v_lshl_add_u32 v10, v12, 4, v10")
    e.i("v_lshrrev_b32 v12, 1, v11")
    e.i("v_lshl_add_u32 v10, v12, 3, v10")
    e.i("s_lshl_b32 s39, s25, 14")
    e.i("s_add_u32 s39, s39, %d" % VST)
    e.i("v_add_u32 v%d, s39, v10" % P_TR)

    e.i("v_lshlrev_b32 v10, 2, v8")
    e.i("v_add_u32 v%d, %d, v10" % (P_LA1, LBUF[1]))

    e.i("s_mov_b32 s27, 0")
    e.i("s_mov_b32 s33, s43")
    e.i("s_sub_u32 s35, s36, 8192")
    tile_next(e, "s28", "s38")
    tile_next(e, "s34", "s28")
    e.i("s_mov_b32 s48, %d" % (NT - 4))
    if OPT["prio_pv"]:
        e.i("s_setprio %d" % OPT["prio_pv"])
    if OPT["vdma_early"]:
        for ks in range(16):
            v_dma(e, ks)
    for k, tag in enumerate(("q0", "q1")):
        e.wv(tag)
        e.stamp(tag + " landed")
        q_write(e, P_RING + 8 * k, k)
    e.wl0()
    e.bar()
    e.stamp("P1 out")
    if not OPT["vdma_early"]:
        for ks in range(16):
            v_dma(e, ks)
    e.stamp("v1 issued")
    e.bar()
    e.stamp("B-1 out")
    e.wv("q2")
    q_write(e, P_RING + 16, 0)
    q_load(e, P_QS[1], "qs1", "s28")
    for b in range(4):
        v_land(e, b)
        e.wl0()
        e.stamp("v batch %d" % b)
        for ks in range(4 * b + 16, 4 * b + 20):
            v_dma(e, ks)
    e.wl0()
    e.bar()
    e.stamp("B0 out")
    pv_interval(e, 0, first=True)
    e.stamp("B1 out")
    st = (list(e.lds), list(e.vm))
    e.i("s_mov_b32 s26, 8")
    e.lab("L_pv_loop")
    e.role = "pv"
    pv_interval(e, 1)
    pv_interval(e, 0)
    e.i("s_sub_u32 s26, s26, 1")
    e.i("s_cmp_lg_u32 s26, 0")
    e.i("s_cbranch_scc1 L_pv_loop")
    e.role = None
    assert (e.lds, e.vm[-6:]) == (st[0], e.vm[-6:]), (e.lds, e.vm, st)
    pv_interval(e, 1, last=True)
    acc = P_ACC[1]
    for f in range(24, 32):
        e.i("%s %s, %s, %s, %s" % (MFMA, vr(acc, 16), vr(P_V + 4 * f, 4), vr(P_RING + 4 * (f & 15), 4), vr(acc, 16)))
    e.i("s_nop 7")
    e.i("s_nop 7")
    for x in epilogue(acc, P_RI[1]):
        e.i(x)
    o_store(e, acc, "s35")
    e.i("v_mov_b32 v8, %d" % FLAG)
    e.i("v_mov_b32 v9, s27")
    e.i("ds_write_b32 v8, v9")
    e.i("s_waitcnt lgkmcnt(0)")


def pv_fallback(e):
    e.i("buffer_load_dwordx4 %s, v%d, s[12:15], s45 offen" % (vr(16, 4), P_QG))
    e.i("buffer_load_dwordx4 %s, v%d, s[12:15], s45 offen offset:128" % (vr(20, 4), P_QG))
    e.i("s_waitcnt vmcnt(0)")
    e.i("ds_write_b128 v%d, %s" % (P_QW, vr(16, 4)))
    e.i("ds_write_b128 v%d, %s offset:%d" % (P_QW, vr(20, 4), 8 * QSTR))
    e.i("s_waitcnt lgkmcnt(0)")
    e.bar()
    e.bar()
    e.bar()
    for k in range(4):
        e.i("ds_read2_b32 %s, v%d offset0:%d offset1:%d" % (vr(P_T + 2 * k, 2), P_LA0, 64 * k, 64 * k + 32))
    e.i("s_waitcnt lgkmcnt(0)")
    for x in l_reduce(P_RI[0], False):
        e.i(x)
    acc = P_ACC[0]
    for b in range(4):
        for k in range(8):
            e.i("ds_read_b128 %s, v%d offset:%d" % (vr(P_RING + 4 * k, 4), P_PA, (8 * b + k) * 1024))
        e.i("s_waitcnt lgkmcnt(0)")
        for k in range(8):
            f = 8 * b + k
            e.i("%s %s, %s, %s, %s" % (MFMA, vr(acc, 16), vr(P_V + 4 * f, 4), vr(P_RING + 4 * k, 4),
                                       "0" if f == 0 else vr(acc, 16)))
        e.i("s_nop 7")
    e.i("s_nop 7")
    e.i("s_nop 7")
    for x in epilogue(acc, P_RI[0]):
        e.i(x)
    e.i("buffer_store_dwordx4 %s, v%d, s[20:23], s45 offen" % (vr(acc, 4), P_OA))
    e.i("buffer_store_dwordx4 %s, v%d, s[20:23], s45 offen offset:32" % (vr(acc + 4, 4), P_OA))
    e.i("s_waitcnt vmcnt(0)")


def main():
    win = OPT["win"]
    lo, hi = f2u(2.0 ** -win), f2u(2.0 ** win)
    if OPT["force_fb"]:
        hi = f2u(2.0 ** -30)

    e = E()
    h = e.lines
    hdr = open("cdna_kernels/%s.s.ref" % NAME).read().split("\n")
    for ln in hdr:
        if ln.startswith("; @launch"):
            h.append("; @launch grid=(256,1,1) block=(512,1,1) lds=%d" % LDS_BYTES)
        elif ln.startswith(";"):
            h.append(ln)
        else:
            break
    h.append('.amdgcn_target "amdgcn-amd-amdhsa--gfx950"')
    h.append(".text")
    h.append(".globl %s_kernel" % NAME)
    h.append(".p2align 8")
    h.append(".type %s_kernel,@function" % NAME)
    h.append("%s_kernel:" % NAME)
    e.i("s_cmp_ge_u32 s2, 256")
    e.i("s_cbranch_scc1 L_end")
    if OPT["stamps"]:
        e.i("s_memrealtime s[98:99]")
        e.i("s_memtime s[96:97]")
        e.i("s_mov_b32 s49, 0")
    e.i("s_load_dwordx4 s[4:7], s[0:1], 0")
    e.i("s_load_dwordx4 s[8:11], s[0:1], 16")
    e.i("v_lshrrev_b32 v1, 6, v0")
    e.i("v_and_b32 v0, 63, v0")
    e.c("group g = (wg>>4)*8 + (wg&7), half = (wg>>3)&1: both halves of a kv head land on one XCD")
    e.i("s_lshr_b32 s3, s2, 4")
    e.i("s_lshl_b32 s3, s3, 3")
    e.i("s_and_b32 s30, s2, 7")
    e.i("s_add_u32 s3, s3, s30")
    e.i("v_readfirstlane_b32 s24, v1")
    e.i("s_bfe_u32 s30, s2, 0x10003")
    e.i("s_lshl_b32 s31, s3, 1")
    e.i("s_add_u32 s31, s31, s30")
    e.i("s_mul_i32 s31, s31, %d" % (576 * 256))
    e.i("s_lshl_b32 s32, s3, 17")
    e.i("s_and_b32 s25, s24, 3")
    e.c("key-block permutation (s42, xor mask on byte offsets) and rotation of the q tile order (s43, tile index)")
    e.i("s_and_b32 s42, s3, %d" % OPT["rotk"])
    e.i("s_lshl_b32 s42, s42, 13")
    if OPT["split"]:
        e.i("s_mul_i32 s43, s30, %d" % (10 * 8192))
        e.i("s_xor_b32 s42, s42, s43")
    e.i("s_and_b32 s43, s3, %d" % OPT["rotq"])
    e.i("s_mov_b32 s29, 0x%08x" % f2u(1.4426950408889634 / (128.0 ** 0.5)))
    e.i("s_mov_b32 s46, 0x%08x" % lo)
    e.i("s_mov_b32 s47, 0x%08x" % hi)
    e.i("s_waitcnt lgkmcnt(0)")
    e.i("s_add_u32 s12, s4, s31")
    e.i("s_addc_u32 s13, s5, 0")
    e.i("s_mov_b32 s14, %d" % (576 * 256))
    e.i("s_mov_b32 s15, 0x00020000")
    e.i("s_add_u32 s20, s10, s31")
    e.i("s_addc_u32 s21, s11, 0")
    e.i("s_mov_b32 s22, %d" % (576 * 256))
    e.i("s_mov_b32 s23, 0x00020000")
    e.i("s_mov_b32 s18, 131072")
    e.i("s_mov_b32 s19, 0x00020000")
    e.i("s_cmp_ge_u32 s24, 4")
    e.i("s_cbranch_scc1 L_pv")
    e.i("s_add_u32 s16, s6, s32")
    e.i("s_addc_u32 s17, s7, 0")
    qk_program(e)
    e.i("s_branch L_join")
    e.lab("L_pv")
    e.lds, e.vm = [], []
    e.i("s_add_u32 s16, s8, s32")
    e.i("s_addc_u32 s17, s9, 0")
    pv_program(e)
    e.lab("L_join")
    e.c("---- tiles whose row sums left the safe window are redone with the true row max")
    e.bar()
    e.i("v_mov_b32 v8, %d" % FLAG)
    e.i("ds_read_b32 v9, v8")
    e.i("s_waitcnt lgkmcnt(0)")
    e.i("v_readfirstlane_b32 s27, v9")
    e.i("s_nop 3")
    e.i("s_cmp_eq_u32 s27, 0")
    e.i("s_cbranch_scc1 L_done")
    e.i("s_waitcnt vmcnt(0)")
    e.i("s_mov_b32 s44, 0")
    e.lab("L_fb_loop")
    e.i("s_lshr_b32 s30, s27, s44")
    e.i("s_and_b32 s30, s30, 1")
    e.i("s_cmp_eq_u32 s30, 0")
    e.i("s_cbranch_scc1 L_fb_next")
    e.i("s_lshl_b32 s45, s44, 13")
    e.i("s_cmp_ge_u32 s24, 4")
    e.i("s_cbranch_scc1 L_fb_pv")
    qk_fallback(e)
    e.i("s_branch L_fb_next")
    e.lab("L_fb_pv")
    pv_fallback(e)
    e.lab("L_fb_next")
    e.i("s_add_u32 s44, s44, 1")
    e.i("s_cmp_lt_u32 s44, %d" % NT)
    e.i("s_cbranch_scc1 L_fb_loop")
    e.lab("L_done")
    e.i("s_waitcnt vmcnt(0)")
    if OPT["stamps"]:
        e.i("s_memtime s[50:51]")
        e.i("s_memrealtime s[100:101]")
        e.i("s_load_dwordx2 s[4:5], s[0:1], 40")
        e.i("s_waitcnt lgkmcnt(0)")
        if OPT["stamps"] == 2:
            e.i("s_mov_b32 s96, 0")
        e.i("s_mov_b32 s94, s96")
        e.i("s_mov_b32 s95, s50")
        e.i("s_lshl_b32 s30, s2, 3")
        e.i("s_add_u32 s30, s30, s24")
        e.i("s_lshl_b32 s30, s30, 8")
        e.i("s_mov_b64 exec, 1")
        e.i("v_mov_b32 v8, s30")
        for k in range(44):
            e.i("v_mov_b32 v9, s%d" % (52 + k))
            e.i("global_store_dword v8, v9, s[4:5] offset:%d" % (4 * k))
        e.i("v_mov_b32 v9, s98")
        e.i("global_store_dword v8, v9, s[4:5] offset:%d" % (4 * 60))
        e.i("v_mov_b32 v9, s100")
        e.i("global_store_dword v8, v9, s[4:5] offset:%d" % (4 * 61))
        if OPT["todbg"]:
            e.i("s_load_dwordx2 s[4:5], s[0:1], 32")
            e.i("s_waitcnt lgkmcnt(0)")
            e.i("s_lshl_b32 s30, s2, 3")
            e.i("s_add_u32 s30, s30, s24")
            e.i("s_cmp_lg_u32 s30, %d" % (OPT["todbg"] * 8 + 4))
            e.i("s_cbranch_scc1 L_nodbg")
            e.i("v_mov_b32 v8, 0")
            for k, r in enumerate((54, 56, 58, 60, 62, 64, 92, 94, 95)):
                e.i("s_sub_u32 s30, s%d, s52" % r)
                e.i("v_mov_b32 v9, s30")
                e.i("global_store_dword v8, v9, s[4:5] offset:%d" % (4 * k))
            e.i("s_sub_u32 s30, s100, s98")
            e.i("v_mov_b32 v9, s30")
            e.i("global_store_dword v8, v9, s[4:5] offset:%d" % (4 * 9))
            e.lab("L_nodbg")
        e.i("s_waitcnt vmcnt(0)")
    e.lab("L_end")
    e.i("s_endpgm")
    h.append('.section .rodata,"a"')
    h.append(".p2align 6")
    h.append(".amdhsa_kernel %s_kernel" % NAME)
    for x in ("next_free_vgpr 256", "next_free_sgpr %d" % (102 if OPT["stamps"] else 64), "accum_offset 256", "group_segment_fixed_size 0",
              "kernarg_size 48", "user_sgpr_count 2", "user_sgpr_kernarg_segment_ptr 1",
              "system_sgpr_workgroup_id_x 1"):
        h.append("  .amdhsa_" + x)
    h.append(".end_amdhsa_kernel")
    open(OUT, "w").write("\n".join(h) + "\n")
    if e.names:
        print(", ".join(e.names))


main()
```

```python
import struct
import sys

NAME = "standalone__gqa_softmax__near_ridge"
NT = 18

PBUF = [0, 32768]
VST = 65536
QSTR = 528
QBUF = [131072, 131072 + 16 * QSTR]
LBUF = [147968, 147968 + 1024]
FLAG = 150016
MAXB = 150272
LDS_BYTES = 151296

OPT = dict(prio_qk=1, prio_pv=0, vdma_early=0, bar_slot=12, rotk=0, rotq=0, split=0, halfonly=0, fake16=0, wgrp=1, searly=0, tlbwarm=0, fakev=0, v1n=16, vmid=0, qfirst=0, dbg=0, todbg=0, dyn=0, dynpv=0, pearly=1, ntq=1, ntk=1, ntv=1, qw_slot=24, ql_slot=1, win=40, force_fb=0, nt_store=1, stamps=0)
for a in sys.argv[1:]:
    if "=" in a:
        k, v = a.split("=")
        if k in OPT:
            OPT[k] = int(v)
NTS = ["", " nt", " sc1", " sc1 nt", " sc0 sc1", " sc0 sc1 nt", " sc0", " sc0 nt"]
OUT = [a for a in sys.argv[1:] if "=" not in a]
OUT = OUT[0] if OUT else "cdna_kernels/%s.s" % NAME


def f2u(x):
    return struct.unpack("<I", struct.pack("<f", x))[0]


MFMA = "v_mfma_f32_32x32x16_bf16"


class E:
    def __init__(s):
        s.lines = []
        s.lds = []
        s.vm = []
        s.nst = 0
        s.role = None
        s.cnt16 = {}
        s.names = []

    def i(s, t):
        d = OPT["dbg"]
        if OPT["fake16"] and s.role and t.startswith(MFMA):
            import re
            m = re.match(r"\S+ v\[(\d+):\d+\], (v\[\d+:\d+\]), (v\[\d+:\d+\]), (.*)", t)
            D, A, B, C = int(m.group(1)), m.group(2), m.group(3), m.group(4)
            key = (s.role, D)
            if C == "0":
                s.cnt16[key] = 0
            k = s.cnt16.get(key, 2)
            s.cnt16[key] = k + 1
            if (s.role == "qk" and OPT["fake16"] & 1) or (s.role == "pv" and OPT["fake16"] & 2):
                for h in range(2):
                    r = D + 4 * (2 * (k & 1) + h)
                    dd = "v[%d:%d]" % (r, r + 3)
                    s.lines.append("    v_mfma_f32_16x16x32_bf16 %s, %s, %s, %s" % (dd, A, B, "0" if k < 2 else dd))
                return
        if d and s.role:
            if s.role == "pv" and d & 1 and t.startswith("v_mfma"):
                return
            if s.role == "qk" and d & 2 and t.startswith("v_mfma"):
                return
            if s.role == "qk" and d & 4 and t.split()[0] in ("v_exp_f32", "v_add_f32", "v_cvt_pk_bf16_f32"):
                return
            if s.role == "pv" and d & 8 and t.startswith("ds_read_b128"):
                return
            if s.role == "pv" and d & 16 and t.startswith("buffer_"):
                return
            if s.role == "qk" and d & 32 and t.startswith("v_exp"):
                return
            if s.role == "qk" and d & 64 and t.startswith("ds_write"):
                return
            if s.role == "qk" and d & 128 and t.startswith("v_add_f32"):
                return
        s.lines.append("    " + t)

    def c(s, t):
        s.lines.append("    ; " + t)

    def lab(s, t):
        s.lines.append(t + ":")

    def ldsop(s, t, tag):
        s.i(t)
        s.lds.append(tag)

    def vmop(s, t, tag):
        s.i(t)
        s.vm.append(tag)

    def wl(s, tag):
        if tag not in s.lds:
            return
        idx = len(s.lds) - 1 - s.lds[::-1].index(tag)
        n = min(len(s.lds) - 1 - idx, 15)
        s.i("s_waitcnt lgkmcnt(%d)" % n)
        s.lds = s.lds[len(s.lds) - n:] if n else []

    def wv(s, tag):
        if tag not in s.vm:
            return
        idx = len(s.vm) - 1 - s.vm[::-1].index(tag)
        n = min(len(s.vm) - 1 - idx, 63)
        s.i("s_waitcnt vmcnt(%d)" % n)
        s.vm = s.vm[len(s.vm) - n:] if n else []

    def wl0(s):
        s.i("s_waitcnt lgkmcnt(0)")
        s.lds = []

    def stamp(s, name):
        if OPT["stamps"] == 2:
            s.i("s_memtime s[50:51]")
            s.i("s_waitcnt lgkmcnt(0)")
            s.lds = []
            s.i("s_mov_b32 s%d, s50" % (52 + s.nst))
            s.nst += 1
            s.names.append(name)

    def bar(s):
        if OPT["stamps"] == 1:
            s.i("s_memtime s[50:51]")
            s.i("s_waitcnt lgkmcnt(0)")
            s.lds = []
            s.i("s_mov_b32 m0, s49")
            s.i("s_nop 0")
            s.i("s_movreld_b32 s52, s96")
            s.i("s_movreld_b32 s53, s50")
            s.i("s_add_u32 s49, s49, 2")
            s.i("s_barrier")
            s.i("s_memtime s[96:97]")
        else:
            s.i("s_barrier")

    def wv0(s):
        s.i("s_waitcnt vmcnt(0)")
        s.vm = []


def vr(a, n=1):
    return "v%d" % a if n == 1 else "v[%d:%d]" % (a, a + n - 1)


Q_QA, Q_PA, Q_LA = 1, 2, 3
Q_L0, Q_L1 = 4, 5
Q_T = 6
Q_PK = [16, 24]
Q_QF = 32
Q_S = 64
Q_K = 128


def kf(j, s):
    return Q_K + (j * 8 + s) * 4


def sm_groups(j, ppar, set_, first_of_tile, last_of_tile):
    gs = []
    pk = Q_PK[set_]
    for g in range(8):
        a = Q_S + 16 * j + 2 * g
        L = [("v", "v_exp_f32 v%d, v%d" % (a, a)), ("v", "v_exp_f32 v%d, v%d" % (a + 1, a + 1))]
        if first_of_tile and g == 0:
            L += [("v", "v_mov_b32 v%d, v%d" % (Q_L0, a)), ("v", "v_mov_b32 v%d, v%d" % (Q_L1, a + 1))]
        else:
            L += [("v", "v_add_f32 v%d, v%d, v%d" % (Q_L0, Q_L0, a)),
                  ("v", "v_add_f32 v%d, v%d, v%d" % (Q_L1, Q_L1, a + 1))]
        L += [("v", "v_cvt_pk_bf16_f32 v%d, v%d, v%d" % (pk + g, a, a + 1))]
        if g == 3 or g == 7:
            u = g >> 2
            off = PBUF[ppar] + (2 * j + u) * 1024
            L += [("l", "ds_write_b128 v%d, %s offset:%d" % (Q_PA, vr(pk + 4 * u, 4), off), "pw")]
        if last_of_tile and g == 7:
            L += [("v", "v_add_f32 v%d, v%d, v%d" % (Q_T, Q_L0, Q_L1)),
                  ("l", "ds_write_b32 v%d, v%d offset:%d" % (Q_LA, Q_T, ppar * 1024), "lw")]
        gs.append(L)
    return gs


def emit_list(e, L):
    for it in L:
        if it[0] == "l":
            e.ldsop(it[1], it[2])
        else:
            e.i(it[1])


def k_dma(e, j):
    for hf in range(2):
        e.i("s_add_u32 m0, s41, %d" % (PBUF[j & 1] + hf * 4096))
        e.i("s_add_u32 s30, s40, %d" % (j * 8192))
        e.i("s_xor_b32 s30, s30, s42")
        if hf:
            e.i("s_add_u32 s30, s30, 4096")
        for i in range(4):
            e.vmop("buffer_load_dwordx4 v%d, s[16:19], s30 offen offset:%d%s lds" % (16 + i, i * 1024, NTS[OPT["ntk"]]), "k%d" % j)


def k_read(e, j):
    e.wv("k%d" % j)
    for s in range(8):
        e.ldsop("ds_read_b128 %s, v%d offset:%d" % (vr(kf(j, s), 4), 8 + s, PBUF[j & 1]), "kr%d" % j)


def k_scale(e, j):
    if j >= 2:
        e.wl("kr%d" % j)
    for r in range(kf(j, 0), kf(j, 0) + 32):
        e.i("v_lshlrev_b32 v6, 16, v%d" % r)
        e.i("v_and_b32 v7, 0xffff0000, v%d" % r)
        e.i("v_mul_f32 v6, s29, v6")
        e.i("v_mul_f32 v7, s29, v7")
        e.i("v_cvt_pk_bf16_f32 v%d, v6, v7" % r)


def qk_iter(e, par, first=False, last=False):
    pp = par ^ 1
    fill = [[] for _ in range(32)]
    if not first:
        g2 = sm_groups(2, pp, 0, False, False)
        fill[0] += g2[6]
        fill[1] += g2[7]
        g3 = sm_groups(3, pp, 1, False, True)
        for k in range(8):
            fill[2 + k] += g3[k]
    g0 = sm_groups(0, par, 0, True, False)
    g1 = sm_groups(1, par, 1, False, False)
    g2 = sm_groups(2, par, 0, False, False)
    for k in range(8):
        fill[10 + k] += g0[k]
        fill[18 + k] += g1[k]
    for k in range(6):
        fill[26 + k] += g2[k]
    for m in range(32):
        j, s = m >> 3, m & 7
        if m == OPT["bar_slot"]:
            e.wl0()
            e.bar()
        if first and m == 10:
            e.stamp("B-1 out")
            k_read(e, 2)
            e.stamp("k2 landed")
        if first and m == 16:
            k_scale(e, 2)
            e.stamp("k2 scaled")
            k_read(e, 3)
            e.stamp("k3 landed")
        if first and m == 24:
            k_scale(e, 3)
            e.stamp("k3 scaled")
        if j == 0:
            e.wl("q%d" % s)
        d = vr(Q_S + 16 * j, 16)
        if OPT["dyn"] and not first:
            e.i("s_setprio %d" % OPT["dyn"])
        e.i("%s %s, %s, %s, %s" % (MFMA, d, vr(kf(j, s), 4), vr(Q_QF + 4 * s, 4), "0" if s == 0 else d))
        if OPT["dyn"] and not first:
            e.i("s_setprio %d" % OPT["prio_qk"])
        if j == 3 and not last:
            e.ldsop("ds_read_b128 %s, v%d offset:%d" % (vr(Q_QF + 4 * s, 4), Q_QA, pp * 16 * QSTR + s * 2 * QSTR),
                    "q%d" % s)
        if first and m in (7, 8, 9) :
            e.i("s_nop 7")
        emit_list(e, fill[m])


def qk_tail(e, par):
    g2 = sm_groups(2, par, 0, False, False)
    emit_list(e, g2[6])
    emit_list(e, g2[7])
    e.i("s_nop 7")
    e.i("s_nop 3")
    for g in sm_groups(3, par, 1, False, True):
        emit_list(e, g)
    e.wl0()
    e.bar()


def qk_program(e):
    e.c("---- QK wave prologue")
    e.i("v_and_b32 v6, 31, v0")
    e.i("v_lshrrev_b32 v7, 5, v0")
    e.i("s_lshl_b32 s40, s25, 15")
    e.i("s_lshl_b32 s41, s25, 13")
    e.c("DMA source: row r = lane>>4, slot = lane&15 holds chunk slot ^ (key&15)")
    e.i("v_lshrrev_b32 v8, 4, v0")
    e.i("v_and_b32 v9, 15, v0")
    e.i("v_xor_b32 v9, v9, v8")
    e.i("v_lshlrev_b32 v9, 4, v9")
    e.i("v_lshl_add_u32 v16, v8, 8, v9")
    for i in range(1, 4):
        e.i("v_xor_b32 v%d, %d, v16" % (16 + i, i << 6))
    e.stamp("start")
    k_dma(e, 0)
    k_dma(e, 1)
    e.stamp("k01 issued")
    e.c("fragment read address of step s: key*256 + ((2s+h) ^ (key&15))*16")
    e.i("v_and_b32 v9, 15, v6")
    e.i("v_xor_b32 v9, v9, v7")
    e.i("v_lshlrev_b32 v9, 4, v9")
    e.i("v_lshl_add_u32 v9, v6, 8, v9")
    e.i("v_add_u32 v8, s41, v9")
    e.i("v_mul_u32_u24 v20, %d, v7" % QSTR)
    e.i("v_lshl_add_u32 v20, v6, 4, v20")
    e.i("v_add_u32 v%d, %d, v20" % (Q_QA, QBUF[0]))
    e.i("v_lshlrev_b32 v20, 4, v0")
    e.i("v_add_u32 v%d, s41, v20" % Q_PA)
    e.i("s_lshl_b32 s30, s25, 8")
    e.i("s_add_u32 s30, s30, %d" % LBUF[0])
    e.i("v_lshlrev_b32 v20, 2, v0")
    e.i("v_add_u32 v%d, s30, v20" % Q_LA)
    for k in range(1, 8):
        e.i("v_xor_b32 v%d, %d, v8" % (8 + k, k << 5))
    k_read(e, 0)
    e.wl0()
    e.stamp("k0 read")
    k_dma(e, 2)
    k_scale(e, 0)
    e.stamp("k0 scaled")
    k_read(e, 1)
    e.wl0()
    e.stamp("k1 read")
    k_dma(e, 3)
    e.stamp("k3 issued")
    if OPT["prio_qk"]:
        e.i("s_setprio %d" % OPT["prio_qk"])
    e.bar()
    for s in range(8):
        e.ldsop("ds_read_b128 %s, v%d offset:%d" % (vr(Q_QF + 4 * s, 4), Q_QA, s * 2 * QSTR), "q%d" % s)
    e.stamp("P1 out")
    k_scale(e, 1)
    e.stamp("k1 scaled")
    qk_iter(e, 0, first=True)
    st = list(e.lds)
    e.i("s_mov_b32 s26, 8")
    e.lab("L_qk_loop")
    e.role = "qk"
    qk_iter(e, 1)
    qk_iter(e, 0)
    n = min(len(e.lds), len(st))
    assert e.lds[-n:] == st[-n:], (e.lds, st)
    e.i("s_sub_u32 s26, s26, 1")
    e.i("s_cmp_lg_u32 s26, 0")
    e.i("s_cbranch_scc1 L_qk_loop")
    e.role = None
    qk_iter(e, 1, last=True)
    qk_tail(e, 1)


def qk_fallback(e):
    e.bar()
    for s in range(8):
        e.i("ds_read_b128 %s, v%d offset:%d" % (vr(Q_QF + 4 * s, 4), Q_QA, s * 2 * QSTR))
    e.i("s_waitcnt lgkmcnt(0)")
    for j in range(4):
        for s in range(8):
            d = vr(Q_S + 16 * j, 16)
            e.i("%s %s, %s, %s, %s" % (MFMA, d, vr(kf(j, s), 4), vr(Q_QF + 4 * s, 4), "0" if s == 0 else d))
    e.i("s_nop 7")
    e.i("s_nop 7")
    e.i("v_max_f32 v6, v%d, v%d" % (Q_S, Q_S + 1))
    for k in range(1, 32):
        e.i("v_max3_f32 v6, v6, v%d, v%d" % (Q_S + 2 * k, Q_S + 2 * k + 1))
    e.i("v_mov_b32 v7, v6")
    e.i("s_nop 1")
    e.i("v_permlane32_swap_b32 v6, v7")
    e.i("s_nop 1")
    e.i("v_max_f32 v6, v6, v7")
    e.i("v_lshlrev_b32 v8, 2, v0")
    e.i("v_add_u32 v8, %d, v8" % MAXB)
    e.i("s_lshl_b32 s30, s25, 8")
    e.i("v_add_u32 v9, s30, v8")
    e.i("ds_write_b32 v9, v6")
    e.i("s_waitcnt lgkmcnt(0)")
    e.bar()
    for k in range(4):
        e.i("ds_read_b32 v%d, v8 offset:%d" % (10 + k, 256 * k))
    e.i("s_waitcnt lgkmcnt(0)")
    e.i("v_max3_f32 v6, v10, v11, v12")
    e.i("v_max_f32 v6, v6, v13")
    for k in range(64):
        e.i("v_sub_f32 v%d, v%d, v6" % (Q_S + k, Q_S + k))
    for j in range(4):
        for g in sm_groups(j, 0, j & 1, j == 0, j == 3):
            for it in g:
                e.i(it[1])
    e.i("s_waitcnt lgkmcnt(0)")
    e.bar()


P_PA, P_LA0, P_QG, P_QW, P_OA = 1, 2, 3, 4, 5
P_RI = [6, 7]
P_T = 8
P_TR, P_LA1, P_VG = 48, 0, 49
P_QS = [16, 24]
P_ACC = [32, 48]
P_RING = 64
P_V = 128


def q_scale(x, n):
    L = []
    for k in range(n):
        t = P_T + 2 * (k & 1)
        L += ["v_lshlrev_b32 v%d, 16, v%d" % (t, x + k),
              "v_and_b32 v%d, 0xffff0000, v%d" % (t + 1, x + k),
              "v_mul_f32 v%d, s29, v%d" % (t, t),
              "v_mul_f32 v%d, s29, v%d" % (t + 1, t + 1),
              "v_cvt_pk_bf16_f32 v%d, v%d, v%d" % (x + k, t, t + 1)]
    return L


def q_load(e, x, tag, soff):
    nt = NTS[OPT["ntq"]]
    e.vmop("buffer_load_dwordx4 %s, v%d, s[12:15], %s offen%s" % (vr(x, 4), P_QG, soff, nt), tag)
    e.vmop("buffer_load_dwordx4 %s, v%d, s[12:15], %s offen offset:128%s" % (vr(x + 4, 4), P_QG, soff, nt), tag)


def q_write(e, x, par):
    e.ldsop("ds_write_b128 v%d, %s offset:%d" % (P_QW, vr(x, 4), par * 16 * QSTR), "qw")
    e.ldsop("ds_write_b128 v%d, %s offset:%d" % (P_QW, vr(x + 4, 4), par * 16 * QSTR + 8 * QSTR), "qw")


def l_reduce(ri, check):
    t = P_T
    L = ["v_add_f32 v%d, v%d, v%d" % (t, t, t + 1), "v_add_f32 v%d, v%d, v%d" % (t + 2, t + 2, t + 3),
         "v_add_f32 v%d, v%d, v%d" % (t + 4, t + 4, t + 5), "v_add_f32 v%d, v%d, v%d" % (t + 6, t + 6, t + 7),
         "v_add_f32 v%d, v%d, v%d" % (t, t, t + 2), "v_add_f32 v%d, v%d, v%d" % (t + 4, t + 4, t + 6),
         "v_add_f32 v%d, v%d, v%d" % (t, t, t + 4),
         "v_rcp_f32 v%d, v%d" % (ri, t)]
    if check:
        L += ["v_cmp_nle_f32 vcc, s46, v%d" % t,
              "v_cmp_nge_f32 s[30:31], s47, v%d" % t,
              "s_nop 1",
              "s_or_b64 vcc, vcc, s[30:31]",
              "s_cmp_lg_u64 vcc, 0",
              "s_cselect_b32 s30, 1, 0",
              "s_lshl_b32 s30, s30, s33",
              "s_or_b32 s27, s27, s30",
              "s_add_u32 s33, s33, 1",
              "s_cmp_eq_u32 s33, %d" % NT,
              "s_cselect_b32 s33, 0, s33"]
    return L


def l_reads(e, par):
    la = P_LA1 if par else P_LA0
    for k in range(4):
        e.ldsop("ds_read2_b32 %s, v%d offset0:%d offset1:%d" % (vr(P_T + 2 * k, 2), la, 64 * k, 64 * k + 32), "l")


def epilogue(acc, ri):
    L = []
    for k in range(8):
        L += ["v_mul_f32 v%d, v%d, v%d" % (acc + 2 * k, acc + 2 * k, ri),
              "v_mul_f32 v%d, v%d, v%d" % (acc + 2 * k + 1, acc + 2 * k + 1, ri),
              "v_cvt_pk_bf16_f32 v%d, v%d, v%d" % (acc + k, acc + 2 * k, acc + 2 * k + 1)]
    return L


def o_store(e, acc, soff):
    nt = NTS[OPT["nt_store"]]
    e.vmop("buffer_store_dwordx4 %s, v%d, s[20:23], %s offen%s" % (vr(acc, 4), P_OA, soff, nt), "o")
    e.vmop("buffer_store_dwordx4 %s, v%d, s[20:23], %s offen offset:32%s" % (vr(acc + 4, 4), P_OA, soff, nt), "o")


def p_read(e, par, f):
    e.ldsop("ds_read_b128 %s, v%d offset:%d" % (vr(P_RING + 4 * (f & 15), 4), P_PA, PBUF[par] + f * 1024), "p%d" % f)


def tile_next(e, d, a):
    e.i("s_add_u32 %s, %s, 8192" % (d, a))
    e.i("s_sub_u32 s31, %s, %d" % (d, NT * 8192))
    e.i("s_cmp_ge_u32 %s, %d" % (d, NT * 8192))
    e.i("s_cselect_b32 %s, s31, %s" % (d, d))


def q_next(e):
    tile_next(e, "s34", "s34")
    e.i("s_sub_u32 s48, s48, 1")
    e.i("s_cmp_le_i32 s48, 0")
    e.i("s_cselect_b32 s34, %d, s34" % (NT * 8192))


def v_dma(e, ks):
    e.i("s_add_u32 m0, s39, %d" % ((ks & 15) * 1024))
    e.i("s_xor_b32 s30, s42, %d" % (ks * 4096))
    e.vmop("buffer_load_dwordx4 v%d, s[16:19], s30 offen%s lds" % (P_VG, NTS[OPT["ntv"]]), "d%d" % ks)


def v_land(e, b):
    e.wv("d%d" % (4 * b + 3))
    for ks in range(4 * b, 4 * b + 4):
        for hf in range(2):
            e.ldsop("ds_read_b64_tr_b16 %s, v%d offset:%d" % (vr(P_V + 4 * ks + 2 * hf, 2), P_TR,
                                                            (ks & 15) * 1024 + 512 * hf), "tr%d" % b)


def pv_interval(e, par, first=False, last=False):
    pp = par ^ 1
    accN, accO = P_ACC[par], P_ACC[pp]
    fill = [[] for _ in range(33)]
    if not first:
        ep = epilogue(accO, P_RI[pp])
        for k in range(8):
            fill[13 + k] += [("v", x) for x in ep[3 * k:3 * k + 3]]
        fill[22] += [("st",)]
    lr = l_reduce(P_RI[par], True)
    fill[4] += [("wl", "l")] + [("v", x) for x in lr[:4]]
    fill[5] += [("v", x) for x in lr[4:8]]
    fill[6] += [("v", x) for x in lr[8:]]
    if not last:
        fill[OPT["qw_slot"]] += [("wv", "qs%d" % pp), ("qw",)]
        fill[OPT["ql_slot"]] += [("ql",)]

    def do_fill(m):
        for it in fill[m]:
            if it[0] == "v":
                e.i(it[1])
            elif it[0] == "wl":
                e.wl(it[1])
            elif it[0] == "wv":
                e.wv(it[1])
            elif it[0] == "st":
                o_store(e, accO, "s35")
            elif it[0] == "qw":
                q_write(e, P_QS[pp], pp)
            elif it[0] == "ql":
                q_load(e, P_QS[par], "qs%d" % par, "s34")

    if OPT["pearly"]:
        reads = {m: [m] for m in range(4)}
        reads.update({4: [4, 5], 5: [6, 7], 6: [8, 9], 7: [10, 11]})
        reads.update({m: [m + 4] for m in range(8, 28)})
    else:
        reads = {m: [m] for m in range(32)}
    for m in range(32):
        if first and m in (20, 24, 28):
            v_land(e, m // 4 - 1)
        if m < 8:
            if not first:
                f = 24 + m
                e.i("%s %s, %s, %s, %s" % (MFMA, vr(accO, 16), vr(P_V + 4 * f, 4), vr(P_RING + 4 * (f & 15), 4),
                                           vr(accO, 16)))
        else:
            f = m - 8
            if first and (f & 3) == 0:
                e.wl("tr%d" % (f >> 2))
            g = OPT["wgrp"]
            if f % g == 0:
                e.wl("p%d" % min(f + g - 1, 23))
            e.i("%s %s, %s, %s, %s" % (MFMA, vr(accN, 16), vr(P_V + 4 * f, 4), vr(P_RING + 4 * (f & 15), 4),
                                       "0" if f == 0 else vr(accN, 16)))
        for f in reads.get(m, []):
            p_read(e, par, f)
        if m < 2:
            la = P_LA1 if par else P_LA0
            for k in (2 * m, 2 * m + 1):
                e.ldsop("ds_read2_b32 %s, v%d offset0:%d offset1:%d" % (vr(P_T + 2 * k, 2), la, 64 * k, 64 * k + 32),
                        "l")
        do_fill(m)
        if OPT["searly"] and m == 28:
            q_next(e)
        if OPT["searly"] and m == 29:
            tile_next(e, "s35", "s35")
    if first:
        v_land(e, 7)
    if not OPT["searly"]:
        q_next(e)
        tile_next(e, "s35", "s35")
    e.wl0()
    if not last:
        e.bar()


def pv_program(e):
    e.c("---- PV wave prologue")
    if OPT["qfirst"]:
        e.i("s_setprio 3")
        e.i("v_lshrrev_b32 v10, 3, v0")
        e.i("s_lshl_b32 s30, s25, 3")
        e.i("v_add_u32 v10, s30, v10")
        e.i("v_and_b32 v11, 7, v0")
        e.i("v_lshlrev_b32 v12, 8, v10")
        e.i("v_lshl_add_u32 v%d, v11, 4, v12" % P_QG)
        e.i("s_lshl_b32 s36, s43, 13")
        tile_next(e, "s37", "s36")
        q_load(e, P_RING, "q0", "s36")
        q_load(e, P_RING + 8, "q1", "s37")
        if OPT["tlbwarm"]:
            e.c("early touch of the V and Q pages used later")
            e.i("s_lshl_b32 s30, s25, 9")
            e.i("v_lshlrev_b32 v13, 11, v0")
            e.i("v_add_u32 v13, s30, v13")
            e.vmop("buffer_load_dword v14, v13, s[16:19], 0 offen", "tw")
            if OPT["tlbwarm"] >= 2:
                e.i("v_mul_u32_u24 v13, 2304, v0")
                e.i("v_add_u32 v13, s30, v13")
                e.vmop("buffer_load_dword v15, v13, s[12:15], 0 offen", "tw")
        e.i("s_setprio 0")
    e.i("v_and_b32 v8, 31, v0")
    e.i("v_lshrrev_b32 v9, 5, v0")
    e.i("v_lshlrev_b32 v%d, 4, v0" % P_PA)
    e.i("v_lshlrev_b32 v10, 2, v8")
    e.i("v_add_u32 v%d, %d, v10" % (P_LA0, LBUF[0]))
    e.i("v_lshrrev_b32 v10, 3, v0")
    e.i("s_lshl_b32 s30, s25, 3")
    e.i("v_add_u32 v10, s30, v10")
    e.i("v_and_b32 v11, 7, v0")
    e.i("v_lshlrev_b32 v12, 8, v10")
    e.i("v_lshl_add_u32 v%d, v11, 4, v12" % P_QG)
    e.i("s_lshl_b32 s36, s43, 13")
    tile_next(e, "s37", "s36")
    tile_next(e, "s38", "s37")
    e.nst, e.names = 0, e.names + ["| PV:"]
    e.stamp("start")
    if not OPT["qfirst"]:
        q_load(e, P_RING, "q0", "s36")
        q_load(e, P_RING + 8, "q1", "s37")
        q_load(e, P_RING + 16, "q2", "s38")
    e.i("v_mul_u32_u24 v12, %d, v11" % QSTR)
    e.i("v_lshl_add_u32 v12, v10, 4, v12")
    e.i("v_add_u32 v%d, %d, v12" % (P_QW, QBUF[0]))
    e.i("s_lshl_b32 s30, s25, 6")
    e.i("v_lshlrev_b32 v12, 8, v8")
    e.i("v_lshl_add_u32 v12, v9, 4, v12")
    e.i("v_add_u32 v%d, s30, v12" % P_OA)
    e.i("v_lshrrev_b32 v10, 2, v0")
    e.i("v_and_b32 v11, 3, v0")
    e.i("v_lshlrev_b32 v12, 8, v10")
    e.i("v_lshl_add_u32 v12, v11, 4, v12")
    e.i("v_add_u32 v%d, s30, v12" % P_VG)
    if OPT["fakev"]:
        e.i("s_lshl_b32 s31, s25, 10")
        e.i("v_lshlrev_b32 v12, 4, v0")
        e.i("v_add_u32 v%d, s31, v12" % P_VG)
    e.i("v_and_b32 v10, 3, v10")
    e.i("v_lshl_add_u32 v10, v9, 2, v10")
    e.i("v_lshlrev_b32 v10, 6, v10")
    e.i("v_bfe_u32 v12, v0, 4, 1")
    e.i("v_lshl_add_u32 v10, v12, 5, v10")
    e.i("v_and_b32 v12, 1, v11")
    e.i("v_lshl_add_u32 v10, v12, 4, v10")
    e.i("v_lshrrev_b32 v12, 1, v11")
    e.i("v_lshl_add_u32 v10, v12, 3, v10")
    e.i("s_lshl_b32 s39, s25, 14")
    e.i("s_add_u32 s39, s39, %d" % VST)
    e.i("v_add_u32 v%d, s39, v10" % P_TR)

    e.i("v_lshlrev_b32 v10, 2, v8")
    e.i("v_add_u32 v%d, %d, v10" % (P_LA1, LBUF[1]))

    e.i("s_mov_b32 s27, 0")
    e.i("s_mov_b32 s33, s43")
    e.i("s_sub_u32 s35, s36, 8192")
    tile_next(e, "s28", "s38")
    tile_next(e, "s34", "s28")
    e.i("s_mov_b32 s48, %d" % (NT - 4))
    if OPT["prio_pv"]:
        e.i("s_setprio %d" % OPT["prio_pv"])
    if OPT["vdma_early"]:
        for ks in range(16):
            v_dma(e, ks)
    for k, tag in enumerate(("q0", "q1")):
        e.wv(tag)
        e.stamp(tag + " landed")
        q_write(e, P_RING + 8 * k, k)
    e.wl0()
    if OPT["qfirst"]:
        q_load(e, P_RING + 16, "q2", "s38")
    for ks in range(OPT["vmid"]):
        v_dma(e, ks)
    e.bar()
    e.stamp("P1 out")
    if not OPT["vdma_early"]:
        for ks in range(OPT["vmid"], OPT["v1n"]):
            v_dma(e, ks)
    e.stamp("v1 issued")
    e.bar()
    e.stamp("B-1 out")
    for ks in range(OPT["v1n"], 16):
        v_dma(e, ks)
    e.wv("q2")
    q_write(e, P_RING + 16, 0)
    q_load(e, P_QS[1], "qs1", "s28")
    for b in range(4):
        v_land(e, b)
        e.wl0()
        e.stamp("v batch %d" % b)
        for ks in range(4 * b + 16, 4 * b + 20):
            v_dma(e, ks)
    e.wl0()
    e.bar()
    e.stamp("B0 out")
    pv_interval(e, 0, first=True)
    e.stamp("B1 out")
    st = (list(e.lds), list(e.vm))
    e.i("s_mov_b32 s26, 8")
    e.lab("L_pv_loop")
    e.role = "pv"
    pv_interval(e, 1)
    pv_interval(e, 0)
    e.i("s_sub_u32 s26, s26, 1")
    e.i("s_cmp_lg_u32 s26, 0")
    e.i("s_cbranch_scc1 L_pv_loop")
    e.role = None
    assert (e.lds, e.vm[-6:]) == (st[0], e.vm[-6:]), (e.lds, e.vm, st)
    pv_interval(e, 1, last=True)
    acc = P_ACC[1]
    for f in range(24, 32):
        e.i("%s %s, %s, %s, %s" % (MFMA, vr(acc, 16), vr(P_V + 4 * f, 4), vr(P_RING + 4 * (f & 15), 4), vr(acc, 16)))
    e.i("s_nop 7")
    e.i("s_nop 7")
    for x in epilogue(acc, P_RI[1]):
        e.i(x)
    o_store(e, acc, "s35")
    e.i("v_mov_b32 v8, %d" % FLAG)
    e.i("v_mov_b32 v9, s27")
    e.i("ds_write_b32 v8, v9")
    e.i("s_waitcnt lgkmcnt(0)")


def pv_fallback(e):
    e.i("buffer_load_dwordx4 %s, v%d, s[12:15], s45 offen" % (vr(16, 4), P_QG))
    e.i("buffer_load_dwordx4 %s, v%d, s[12:15], s45 offen offset:128" % (vr(20, 4), P_QG))
    e.i("s_waitcnt vmcnt(0)")
    e.i("ds_write_b128 v%d, %s" % (P_QW, vr(16, 4)))
    e.i("ds_write_b128 v%d, %s offset:%d" % (P_QW, vr(20, 4), 8 * QSTR))
    e.i("s_waitcnt lgkmcnt(0)")
    e.bar()
    e.bar()
    e.bar()
    for k in range(4):
        e.i("ds_read2_b32 %s, v%d offset0:%d offset1:%d" % (vr(P_T + 2 * k, 2), P_LA0, 64 * k, 64 * k + 32))
    e.i("s_waitcnt lgkmcnt(0)")
    for x in l_reduce(P_RI[0], False):
        e.i(x)
    acc = P_ACC[0]
    for b in range(4):
        for k in range(8):
            e.i("ds_read_b128 %s, v%d offset:%d" % (vr(P_RING + 4 * k, 4), P_PA, (8 * b + k) * 1024))
        e.i("s_waitcnt lgkmcnt(0)")
        for k in range(8):
            f = 8 * b + k
            e.i("%s %s, %s, %s, %s" % (MFMA, vr(acc, 16), vr(P_V + 4 * f, 4), vr(P_RING + 4 * k, 4),
                                       "0" if f == 0 else vr(acc, 16)))
        e.i("s_nop 7")
    e.i("s_nop 7")
    e.i("s_nop 7")
    for x in epilogue(acc, P_RI[0]):
        e.i(x)
    e.i("buffer_store_dwordx4 %s, v%d, s[20:23], s45 offen" % (vr(acc, 4), P_OA))
    e.i("buffer_store_dwordx4 %s, v%d, s[20:23], s45 offen offset:32" % (vr(acc + 4, 4), P_OA))
    e.i("s_waitcnt vmcnt(0)")


def main():
    win = OPT["win"]
    lo, hi = f2u(2.0 ** -win), f2u(2.0 ** win)
    if OPT["force_fb"]:
        hi = f2u(2.0 ** -30)

    e = E()
    h = e.lines
    hdr = open("cdna_kernels/%s.s.ref" % NAME).read().split("\n")
    for ln in hdr:
        if ln.startswith("; @launch"):
            h.append("; @launch grid=(256,1,1) block=(512,1,1) lds=%d" % LDS_BYTES)
        elif ln.startswith(";"):
            h.append(ln)
        else:
            break
    h.append('.amdgcn_target "amdgcn-amd-amdhsa--gfx950"')
    h.append(".text")
    h.append(".globl %s_kernel" % NAME)
    h.append(".p2align 8")
    h.append(".type %s_kernel,@function" % NAME)
    h.append("%s_kernel:" % NAME)
    e.i("s_cmp_ge_u32 s2, 256")
    e.i("s_cbranch_scc1 L_end")
    if OPT["stamps"]:
        e.i("s_memrealtime s[98:99]")
        e.i("s_memtime s[96:97]")
        e.i("s_mov_b32 s49, 0")
    e.i("s_load_dwordx4 s[4:7], s[0:1], 0")
    e.i("s_load_dwordx4 s[8:11], s[0:1], 16")
    e.i("v_lshrrev_b32 v1, 6, v0")
    e.i("v_and_b32 v0, 63, v0")
    e.c("group g = (wg>>4)*8 + (wg&7), half = (wg>>3)&1: both halves of a kv head land on one XCD")
    e.i("s_lshr_b32 s3, s2, 4")
    e.i("s_lshl_b32 s3, s3, 3")
    e.i("s_and_b32 s30, s2, 7")
    e.i("s_add_u32 s3, s3, s30")
    e.i("v_readfirstlane_b32 s24, v1")
    e.i("s_bfe_u32 s30, s2, 0x10003")
    if OPT["halfonly"]:
        e.i("s_cmp_eq_u32 s30, 1")
        e.i("s_cbranch_scc1 L_end")
    if OPT["halfonly"] == 2:
        e.i("s_bitcmp1_b32 s2, 4")
        e.i("s_cbranch_scc1 L_end")
    e.i("s_lshl_b32 s31, s3, 1")
    e.i("s_add_u32 s31, s31, s30")
    e.i("s_mul_i32 s31, s31, %d" % (576 * 256))
    e.i("s_lshl_b32 s32, s3, 17")
    e.i("s_and_b32 s25, s24, 3")
    e.c("key-block permutation (s42, xor mask on byte offsets) and rotation of the q tile order (s43, tile index)")
    e.i("s_and_b32 s42, s3, %d" % OPT["rotk"])
    e.i("s_lshl_b32 s42, s42, 13")
    if OPT["split"]:
        e.i("s_mul_i32 s43, s30, %d" % (10 * 8192))
        e.i("s_xor_b32 s42, s42, s43")
    e.i("s_and_b32 s43, s3, %d" % OPT["rotq"])
    e.i("s_mov_b32 s29, 0x%08x" % f2u(1.4426950408889634 / (128.0 ** 0.5)))
    e.i("s_mov_b32 s46, 0x%08x" % lo)
    e.i("s_mov_b32 s47, 0x%08x" % hi)
    e.i("s_waitcnt lgkmcnt(0)")
    e.i("s_add_u32 s12, s4, s31")
    e.i("s_addc_u32 s13, s5, 0")
    e.i("s_mov_b32 s14, %d" % (576 * 256))
    e.i("s_mov_b32 s15, 0x00020000")
    e.i("s_add_u32 s20, s10, s31")
    e.i("s_addc_u32 s21, s11, 0")
    e.i("s_mov_b32 s22, %d" % (576 * 256))
    e.i("s_mov_b32 s23, 0x00020000")
    e.i("s_mov_b32 s18, 131072")
    e.i("s_mov_b32 s19, 0x00020000")
    e.i("s_cmp_ge_u32 s24, 4")
    e.i("s_cbranch_scc1 L_pv")
    e.i("s_add_u32 s16, s6, s32")
    e.i("s_addc_u32 s17, s7, 0")
    qk_program(e)
    e.i("s_branch L_join")
    e.lab("L_pv")
    e.lds, e.vm = [], []
    e.i("s_add_u32 s16, s8, s32")
    e.i("s_addc_u32 s17, s9, 0")
    pv_program(e)
    e.lab("L_join")
    e.c("---- tiles whose row sums left the safe window are redone with the true row max")
    e.bar()
    e.i("v_mov_b32 v8, %d" % FLAG)
    e.i("ds_read_b32 v9, v8")
    e.i("s_waitcnt lgkmcnt(0)")
    e.i("v_readfirstlane_b32 s27, v9")
    e.i("s_nop 3")
    e.i("s_cmp_eq_u32 s27, 0")
    e.i("s_cbranch_scc1 L_done")
    e.i("s_waitcnt vmcnt(0)")
    e.i("s_mov_b32 s44, 0")
    e.lab("L_fb_loop")
    e.i("s_lshr_b32 s30, s27, s44")
    e.i("s_and_b32 s30, s30, 1")
    e.i("s_cmp_eq_u32 s30, 0")
    e.i("s_cbranch_scc1 L_fb_next")
    e.i("s_lshl_b32 s45, s44, 13")
    e.i("s_cmp_ge_u32 s24, 4")
    e.i("s_cbranch_scc1 L_fb_pv")
    qk_fallback(e)
    e.i("s_branch L_fb_next")
    e.lab("L_fb_pv")
    pv_fallback(e)
    e.lab("L_fb_next")
    e.i("s_add_u32 s44, s44, 1")
    e.i("s_cmp_lt_u32 s44, %d" % NT)
    e.i("s_cbranch_scc1 L_fb_loop")
    e.lab("L_done")
    e.i("s_waitcnt vmcnt(0)")
    if OPT["stamps"]:
        e.i("s_memtime s[50:51]")
        e.i("s_memrealtime s[100:101]")
        e.i("s_load_dwordx2 s[4:5], s[0:1], 40")
        e.i("s_waitcnt lgkmcnt(0)")
        if OPT["stamps"] == 2:
            e.i("s_mov_b32 s96, 0")
        e.i("s_mov_b32 s94, s96")
        e.i("s_mov_b32 s95, s50")
        e.i("s_lshl_b32 s30, s2, 3")
        e.i("s_add_u32 s30, s30, s24")
        e.i("s_lshl_b32 s30, s30, 8")
        e.i("s_mov_b64 exec, 1")
        e.i("v_mov_b32 v8, s30")
        for k in range(44):
            e.i("v_mov_b32 v9, s%d" % (52 + k))
            e.i("global_store_dword v8, v9, s[4:5] offset:%d" % (4 * k))
        e.i("v_mov_b32 v9, s98")
        e.i("global_store_dword v8, v9, s[4:5] offset:%d" % (4 * 60))
        e.i("v_mov_b32 v9, s100")
        e.i("global_store_dword v8, v9, s[4:5] offset:%d" % (4 * 61))
        if OPT["todbg"]:
            e.i("s_load_dwordx2 s[4:5], s[0:1], 32")
            e.i("s_waitcnt lgkmcnt(0)")
            e.i("s_lshl_b32 s30, s2, 3")
            e.i("s_add_u32 s30, s30, s24")
            e.i("s_cmp_lg_u32 s30, %d" % (OPT["todbg"] * 8 + 4))
            e.i("s_cbranch_scc1 L_nodbg")
            e.i("v_mov_b32 v8, 0")
            for k, r in enumerate((54, 56, 58, 60, 62, 64, 92, 94, 95)):
                e.i("s_sub_u32 s30, s%d, s52" % r)
                e.i("v_mov_b32 v9, s30")
                e.i("global_store_dword v8, v9, s[4:5] offset:%d" % (4 * k))
            e.i("s_sub_u32 s30, s100, s98")
            e.i("v_mov_b32 v9, s30")
            e.i("global_store_dword v8, v9, s[4:5] offset:%d" % (4 * 9))
            e.lab("L_nodbg")
        e.i("s_waitcnt vmcnt(0)")
    e.lab("L_end")
    e.i("s_endpgm")
    h.append('.section .rodata,"a"')
    h.append(".p2align 6")
    h.append(".amdhsa_kernel %s_kernel" % NAME)
    for x in ("next_free_vgpr 256", "next_free_sgpr %d" % (102 if OPT["stamps"] else 64), "accum_offset 256", "group_segment_fixed_size 0",
              "kernarg_size 48", "user_sgpr_count 2", "user_sgpr_kernarg_segment_ptr 1",
              "system_sgpr_workgroup_id_x 1"):
        h.append("  .amdhsa_" + x)
    h.append(".end_amdhsa_kernel")
    open(OUT, "w").write("\n".join(h) + "\n")
    if e.names:
        print(", ".join(e.names))


main()
```

```python
import struct
import sys

NAME = "standalone__gqa_softmax__near_ridge"
NT = 18

PBUF = [0, 32768]
VST = 65536
QSTR = 528
QBUF = [131072, 131072 + 16 * QSTR]
LBUF = [147968, 147968 + 1024]
FLAG = 150016
MAXB = 150272
LDS_BYTES = 151296

OPT = dict(hoist=0, pkm=0, dot2=0, prio_qk=1, prio_pv=0, vdma_early=0, bar_slot=12, rotk=0, rotq=0, split=0, halfonly=0, fake16=0, wgrp=1, searly=0, tlbwarm=0, fakev=0, v1n=16, vmid=0, qfirst=0, dbg=0, todbg=0, dyn=0, dynpv=0, pearly=1, ntq=1, ntk=1, ntv=1, qw_slot=24, ql_slot=1, win=40, force_fb=0, nt_store=1, stamps=0)
for a in sys.argv[1:]:
    if "=" in a:
        k, v = a.split("=")
        if k in OPT:
            OPT[k] = int(v)
NTS = ["", " nt", " sc1", " sc1 nt", " sc0 sc1", " sc0 sc1 nt", " sc0", " sc0 nt"]
OUT = [a for a in sys.argv[1:] if "=" not in a]
OUT = OUT[0] if OUT else "cdna_kernels/%s.s" % NAME


def f2u(x):
    return struct.unpack("<I", struct.pack("<f", x))[0]


MFMA = "v_mfma_f32_32x32x16_bf16"


class E:
    def __init__(s):
        s.lines = []
        s.lds = []
        s.vm = []
        s.nst = 0
        s.role = None
        s.cnt16 = {}
        s.names = []

    def i(s, t):
        d = OPT["dbg"]
        if OPT["fake16"] and s.role and t.startswith(MFMA):
            import re
            m = re.match(r"\S+ v\[(\d+):\d+\], (v\[\d+:\d+\]), (v\[\d+:\d+\]), (.*)", t)
            D, A, B, C = int(m.group(1)), m.group(2), m.group(3), m.group(4)
            key = (s.role, D)
            if C == "0":
                s.cnt16[key] = 0
            k = s.cnt16.get(key, 2)
            s.cnt16[key] = k + 1
            if (s.role == "qk" and OPT["fake16"] & 1) or (s.role == "pv" and OPT["fake16"] & 2):
                for h in range(2):
                    r = D + 4 * (2 * (k & 1) + h)
                    dd = "v[%d:%d]" % (r, r + 3)
                    s.lines.append("    v_mfma_f32_16x16x32_bf16 %s, %s, %s, %s" % (dd, A, B, "0" if k < 2 else dd))
                return
        if d and s.role:
            if s.role == "pv" and d & 1 and t.startswith("v_mfma"):
                return
            if s.role == "qk" and d & 2 and t.startswith("v_mfma"):
                return
            if s.role == "qk" and d & 4 and t.split()[0] in ("v_exp_f32", "v_add_f32", "v_cvt_pk_bf16_f32"):
                return
            if s.role == "pv" and d & 8 and t.startswith("ds_read_b128"):
                return
            if s.role == "pv" and d & 16 and t.startswith("buffer_"):
                return
            if s.role == "qk" and d & 32 and t.startswith("v_exp"):
                return
            if s.role == "qk" and d & 64 and t.startswith("ds_write"):
                return
            if s.role == "qk" and d & 128 and t.startswith("v_add_f32"):
                return
        s.lines.append("    " + t)

    def c(s, t):
        s.lines.append("    ; " + t)

    def lab(s, t):
        s.lines.append(t + ":")

    def ldsop(s, t, tag):
        s.i(t)
        s.lds.append(tag)

    def vmop(s, t, tag):
        s.i(t)
        s.vm.append(tag)

    def wl(s, tag):
        if tag not in s.lds:
            return
        idx = len(s.lds) - 1 - s.lds[::-1].index(tag)
        n = min(len(s.lds) - 1 - idx, 15)
        s.i("s_waitcnt lgkmcnt(%d)" % n)
        s.lds = s.lds[len(s.lds) - n:] if n else []

    def wv(s, tag):
        if tag not in s.vm:
            return
        idx = len(s.vm) - 1 - s.vm[::-1].index(tag)
        n = min(len(s.vm) - 1 - idx, 63)
        s.i("s_waitcnt vmcnt(%d)" % n)
        s.vm = s.vm[len(s.vm) - n:] if n else []

    def wl0(s):
        s.i("s_waitcnt lgkmcnt(0)")
        s.lds = []

    def stamp(s, name):
        if OPT["stamps"] == 2:
            s.i("s_memtime s[50:51]")
            s.i("s_waitcnt lgkmcnt(0)")
            s.lds = []
            s.i("s_mov_b32 s%d, s50" % (52 + s.nst))
            s.nst += 1
            s.names.append(name)

    def bar(s):
        if OPT["stamps"] == 1:
            s.i("s_memtime s[50:51]")
            s.i("s_waitcnt lgkmcnt(0)")
            s.lds = []
            s.i("s_mov_b32 m0, s49")
            s.i("s_nop 0")
            s.i("s_movreld_b32 s52, s96")
            s.i("s_movreld_b32 s53, s50")
            s.i("s_add_u32 s49, s49, 2")
            s.i("s_barrier")
            s.i("s_memtime s[96:97]")
        else:
            s.i("s_barrier")

    def wv0(s):
        s.i("s_waitcnt vmcnt(0)")
        s.vm = []


def vr(a, n=1):
    return "v%d" % a if n == 1 else "v[%d:%d]" % (a, a + n - 1)


Q_QA, Q_PA, Q_LA = 1, 2, 3
Q_L0, Q_L1 = 4, 5
Q_T = 6
Q_PK = [16, 24]
Q_QF = 32
Q_S = 64
Q_K = 128


def kf(j, s):
    return Q_K + (j * 8 + s) * 4


def sm_groups(j, ppar, set_, first_of_tile, last_of_tile):
    gs = []
    pk = Q_PK[set_]
    for g in range(8):
        a = Q_S + 16 * j + 2 * g
        L = [("v", "v_exp_f32 v%d, v%d" % (a, a)), ("v", "v_exp_f32 v%d, v%d" % (a + 1, a + 1))]
        if OPT["dot2"]:
            def dot(src, idx, init):
                acc = Q_L1 if idx & 1 else Q_L0
                if init:
                    return ("v", "v_dot2_f32_bf16 v%d, v%d, s49, 0" % (acc, src))
                if OPT["dot2"] == 1:
                    return ("v", "v_dot2_f32_bf16 v%d, v%d, s49, v%d" % (acc, src, acc))
                return ("v", "v_dot2c_f32_bf16 v%d, s49, v%d" % (acc, src))
            if g > 0:
                L += [dot(pk + g - 1, g - 1, first_of_tile and g <= 2)]
            elif first_of_tile:
                L += [("v", "s_nop 0")]
            else:
                L += [dot(Q_PK[set_ ^ 1] + 7, 7, False)]
            L += [("v", "v_cvt_pk_bf16_f32 v%d, v%d, v%d" % (pk + g, a, a + 1))]
            if last_of_tile and g == 7:
                L += [dot(pk + 7, 7, False)]
        else:
            if first_of_tile and g == 0:
                L += [("v", "v_mov_b32 v%d, v%d" % (Q_L0, a)), ("v", "v_mov_b32 v%d, v%d" % (Q_L1, a + 1))]
            else:
                L += [("v", "v_add_f32 v%d, v%d, v%d" % (Q_L0, Q_L0, a)),
                      ("v", "v_add_f32 v%d, v%d, v%d" % (Q_L1, Q_L1, a + 1))]
            L += [("v", "v_cvt_pk_bf16_f32 v%d, v%d, v%d" % (pk + g, a, a + 1))]
        if g == 3 or g == 7:
            u = g >> 2
            off = PBUF[ppar] + (2 * j + u) * 1024
            L += [("l", "ds_write_b128 v%d, %s offset:%d" % (Q_PA, vr(pk + 4 * u, 4), off), "pw")]
        if last_of_tile and g == 7:
            if OPT["dot2"]:
                L += [("v", "s_nop 2")]
            L += [("v", "v_add_f32 v%d, v%d, v%d" % (Q_T, Q_L0, Q_L1)),
                  ("l", "ds_write_b32 v%d, v%d offset:%d" % (Q_LA, Q_T, ppar * 1024), "lw")]
        gs.append(L)
    return gs


def emit_list(e, L):
    for it in L:
        if it[0] == "l":
            e.ldsop(it[1], it[2])
        else:
            e.i(it[1])


def k_dma(e, j):
    for hf in range(2):
        e.i("s_add_u32 m0, s41, %d" % (PBUF[j & 1] + hf * 4096))
        e.i("s_add_u32 s30, s40, %d" % (j * 8192))
        e.i("s_xor_b32 s30, s30, s42")
        if hf:
            e.i("s_add_u32 s30, s30, 4096")
        for i in range(4):
            e.vmop("buffer_load_dwordx4 v%d, s[16:19], s30 offen offset:%d%s lds" % (16 + i, i * 1024, NTS[OPT["ntk"]]), "k%d" % j)


def k_read(e, j):
    e.wv("k%d" % j)
    for s in range(8):
        e.ldsop("ds_read_b128 %s, v%d offset:%d" % (vr(kf(j, s), 4), 8 + s, PBUF[j & 1]), "kr%d" % j)


def k_scale(e, j):
    if j >= 2:
        e.wl("kr%d" % j)
    for r in range(kf(j, 0), kf(j, 0) + 32):
        e.i("v_lshlrev_b32 v6, 16, v%d" % r)
        e.i("v_and_b32 v7, 0xffff0000, v%d" % r)
        if OPT["pkm"]:
            e.i("v_pk_mul_f32 v[6:7], v[6:7], s[28:29] op_sel:[0,1] op_sel_hi:[1,1]")
        else:
            e.i("v_mul_f32 v6, s29, v6")
            e.i("v_mul_f32 v7, s29, v7")
        e.i("v_cvt_pk_bf16_f32 v%d, v6, v7" % r)


def qk_iter(e, par, first=False, last=False):
    pp = par ^ 1
    fill = [[] for _ in range(32)]
    if not first:
        g2 = sm_groups(2, pp, 0, False, False)
        fill[0] += g2[6]
        fill[1] += g2[7]
        g3 = sm_groups(3, pp, 1, False, True)
        for k in range(8):
            fill[2 + k] += g3[k]
    g0 = sm_groups(0, par, 0, True, False)
    g1 = sm_groups(1, par, 1, False, False)
    g2 = sm_groups(2, par, 0, False, False)
    for k in range(8):
        fill[10 + k] += g0[k]
        fill[18 + k] += g1[k]
    for k in range(6):
        fill[26 + k] += g2[k]
    for m in range(32):
        j, s = m >> 3, m & 7
        if m == OPT["bar_slot"]:
            e.wl0()
            e.bar()
        if first and m == 10:
            e.stamp("B-1 out")
            k_read(e, 2)
            e.stamp("k2 landed")
        if first and m == 16:
            k_scale(e, 2)
            e.stamp("k2 scaled")
            k_read(e, 3)
            e.stamp("k3 landed")
        if first and m == 24:
            k_scale(e, 3)
            e.stamp("k3 scaled")
        if j == 0:
            e.wl("q%d" % s)
        d = vr(Q_S + 16 * j, 16)
        if OPT["dyn"] and not first:
            e.i("s_setprio %d" % OPT["dyn"])
        e.i("%s %s, %s, %s, %s" % (MFMA, d, vr(kf(j, s), 4), vr(Q_QF + 4 * s, 4), "0" if s == 0 else d))
        if OPT["dyn"] and not first:
            e.i("s_setprio %d" % OPT["prio_qk"])
        if j == 3 and not last:
            e.ldsop("ds_read_b128 %s, v%d offset:%d" % (vr(Q_QF + 4 * s, 4), Q_QA, pp * 16 * QSTR + s * 2 * QSTR),
                    "q%d" % s)
        if first and m in (7, 8, 9) :
            e.i("s_nop 7")
        emit_list(e, fill[m])


def qk_tail(e, par):
    g2 = sm_groups(2, par, 0, False, False)
    emit_list(e, g2[6])
    emit_list(e, g2[7])
    e.i("s_nop 7")
    e.i("s_nop 3")
    for g in sm_groups(3, par, 1, False, True):
        emit_list(e, g)
    e.wl0()
    e.bar()


def qk_program(e):
    e.c("---- QK wave prologue")
    e.i("v_and_b32 v6, 31, v0")
    e.i("v_lshrrev_b32 v7, 5, v0")
    e.i("s_lshl_b32 s40, s25, 15")
    e.i("s_lshl_b32 s41, s25, 13")
    e.c("DMA source: row r = lane>>4, slot = lane&15 holds chunk slot ^ (key&15)")
    e.i("v_lshrrev_b32 v8, 4, v0")
    e.i("v_and_b32 v9, 15, v0")
    e.i("v_xor_b32 v9, v9, v8")
    e.i("v_lshlrev_b32 v9, 4, v9")
    e.i("v_lshl_add_u32 v16, v8, 8, v9")
    for i in range(1, 4):
        e.i("v_xor_b32 v%d, %d, v16" % (16 + i, i << 6))
    e.stamp("start")
    k_dma(e, 0)
    k_dma(e, 1)
    e.stamp("k01 issued")
    e.c("fragment read address of step s: key*256 + ((2s+h) ^ (key&15))*16")
    e.i("v_and_b32 v9, 15, v6")
    e.i("v_xor_b32 v9, v9, v7")
    e.i("v_lshlrev_b32 v9, 4, v9")
    e.i("v_lshl_add_u32 v9, v6, 8, v9")
    e.i("v_add_u32 v8, s41, v9")
    e.i("v_mul_u32_u24 v20, %d, v7" % QSTR)
    e.i("v_lshl_add_u32 v20, v6, 4, v20")
    e.i("v_add_u32 v%d, %d, v20" % (Q_QA, QBUF[0]))
    e.i("v_lshlrev_b32 v20, 4, v0")
    e.i("v_add_u32 v%d, s41, v20" % Q_PA)
    e.i("s_lshl_b32 s30, s25, 8")
    e.i("s_add_u32 s30, s30, %d" % LBUF[0])
    e.i("v_lshlrev_b32 v20, 2, v0")
    e.i("v_add_u32 v%d, s30, v20" % Q_LA)
    for k in range(1, 8):
        e.i("v_xor_b32 v%d, %d, v8" % (8 + k, k << 5))
    k_read(e, 0)
    e.wl0()
    e.stamp("k0 read")
    k_dma(e, 2)
    k_scale(e, 0)
    e.stamp("k0 scaled")
    k_read(e, 1)
    e.wl0()
    e.stamp("k1 read")
    k_dma(e, 3)
    e.stamp("k3 issued")
    if OPT["prio_qk"]:
        e.i("s_setprio %d" % OPT["prio_qk"])
    e.bar()
    for s in range(8):
        e.ldsop("ds_read_b128 %s, v%d offset:%d" % (vr(Q_QF + 4 * s, 4), Q_QA, s * 2 * QSTR), "q%d" % s)
    e.stamp("P1 out")
    k_scale(e, 1)
    e.stamp("k1 scaled")
    qk_iter(e, 0, first=True)
    st = list(e.lds)
    e.i("s_mov_b32 s26, 8")
    e.lab("L_qk_loop")
    e.role = "qk"
    qk_iter(e, 1)
    qk_iter(e, 0)
    n = min(len(e.lds), len(st))
    assert e.lds[-n:] == st[-n:], (e.lds, st)
    e.i("s_sub_u32 s26, s26, 1")
    e.i("s_cmp_lg_u32 s26, 0")
    e.i("s_cbranch_scc1 L_qk_loop")
    e.role = None
    qk_iter(e, 1, last=True)
    qk_tail(e, 1)


def qk_fallback(e):
    e.bar()
    for s in range(8):
        e.i("ds_read_b128 %s, v%d offset:%d" % (vr(Q_QF + 4 * s, 4), Q_QA, s * 2 * QSTR))
    e.i("s_waitcnt lgkmcnt(0)")
    for j in range(4):
        for s in range(8):
            d = vr(Q_S + 16 * j, 16)
            e.i("%s %s, %s, %s, %s" % (MFMA, d, vr(kf(j, s), 4), vr(Q_QF + 4 * s, 4), "0" if s == 0 else d))
    e.i("s_nop 7")
    e.i("s_nop 7")
    e.i("v_max_f32 v6, v%d, v%d" % (Q_S, Q_S + 1))
    for k in range(1, 32):
        e.i("v_max3_f32 v6, v6, v%d, v%d" % (Q_S + 2 * k, Q_S + 2 * k + 1))
    e.i("v_mov_b32 v7, v6")
    e.i("s_nop 1")
    e.i("v_permlane32_swap_b32 v6, v7")
    e.i("s_nop 1")
    e.i("v_max_f32 v6, v6, v7")
    e.i("v_lshlrev_b32 v8, 2, v0")
    e.i("v_add_u32 v8, %d, v8" % MAXB)
    e.i("s_lshl_b32 s30, s25, 8")
    e.i("v_add_u32 v9, s30, v8")
    e.i("ds_write_b32 v9, v6")
    e.i("s_waitcnt lgkmcnt(0)")
    e.bar()
    for k in range(4):
        e.i("ds_read_b32 v%d, v8 offset:%d" % (10 + k, 256 * k))
    e.i("s_waitcnt lgkmcnt(0)")
    e.i("v_max3_f32 v6, v10, v11, v12")
    e.i("v_max_f32 v6, v6, v13")
    for k in range(64):
        e.i("v_sub_f32 v%d, v%d, v6" % (Q_S + k, Q_S + k))
    for j in range(4):
        for g in sm_groups(j, 0, j & 1, j == 0, j == 3):
            for it in g:
                e.i(it[1])
    e.i("s_waitcnt lgkmcnt(0)")
    e.bar()


P_PA, P_LA0, P_QG, P_QW, P_OA = 1, 2, 3, 4, 5
P_RI = [6, 7]
P_T = 8
P_TR, P_LA1, P_VG = 48, 0, 49
P_QS = [16, 24]
P_ACC = [32, 48]
P_RING = 64
P_V = 128


def q_scale(x, n):
    L = []
    for k in range(n):
        t = P_T + 2 * (k & 1)
        L += ["v_lshlrev_b32 v%d, 16, v%d" % (t, x + k),
              "v_and_b32 v%d, 0xffff0000, v%d" % (t + 1, x + k),
              "v_mul_f32 v%d, s29, v%d" % (t, t),
              "v_mul_f32 v%d, s29, v%d" % (t + 1, t + 1),
              "v_cvt_pk_bf16_f32 v%d, v%d, v%d" % (x + k, t, t + 1)]
    return L


def q_load(e, x, tag, soff):
    nt = NTS[OPT["ntq"]]
    e.vmop("buffer_load_dwordx4 %s, v%d, s[12:15], %s offen%s" % (vr(x, 4), P_QG, soff, nt), tag)
    e.vmop("buffer_load_dwordx4 %s, v%d, s[12:15], %s offen offset:128%s" % (vr(x + 4, 4), P_QG, soff, nt), tag)


def q_write(e, x, par):
    e.ldsop("ds_write_b128 v%d, %s offset:%d" % (P_QW, vr(x, 4), par * 16 * QSTR), "qw")
    e.ldsop("ds_write_b128 v%d, %s offset:%d" % (P_QW, vr(x + 4, 4), par * 16 * QSTR + 8 * QSTR), "qw")


def l_reduce(ri, check):
    t = P_T
    L = ["v_add_f32 v%d, v%d, v%d" % (t, t, t + 1), "v_add_f32 v%d, v%d, v%d" % (t + 2, t + 2, t + 3),
         "v_add_f32 v%d, v%d, v%d" % (t + 4, t + 4, t + 5), "v_add_f32 v%d, v%d, v%d" % (t + 6, t + 6, t + 7),
         "v_add_f32 v%d, v%d, v%d" % (t, t, t + 2), "v_add_f32 v%d, v%d, v%d" % (t + 4, t + 4, t + 6),
         "v_add_f32 v%d, v%d, v%d" % (t, t, t + 4),
         "v_rcp_f32 v%d, v%d" % (ri, t)]
    if check:
        L += ["v_cmp_nle_f32 vcc, s46, v%d" % t,
              "v_cmp_nge_f32 s[30:31], s47, v%d" % t,
              "s_nop 1",
              "s_or_b64 vcc, vcc, s[30:31]",
              "s_cmp_lg_u64 vcc, 0",
              "s_cselect_b32 s30, 1, 0",
              "s_lshl_b32 s30, s30, s33",
              "s_or_b32 s27, s27, s30",
              "s_add_u32 s33, s33, 1",
              "s_cmp_eq_u32 s33, %d" % NT,
              "s_cselect_b32 s33, 0, s33"]
    return L


def l_reads(e, par):
    la = P_LA1 if par else P_LA0
    for k in range(4):
        e.ldsop("ds_read2_b32 %s, v%d offset0:%d offset1:%d" % (vr(P_T + 2 * k, 2), la, 64 * k, 64 * k + 32), "l")


def epilogue(acc, ri):
    L = []
    for k in range(8):
        L += ["v_mul_f32 v%d, v%d, v%d" % (acc + 2 * k, acc + 2 * k, ri),
              "v_mul_f32 v%d, v%d, v%d" % (acc + 2 * k + 1, acc + 2 * k + 1, ri),
              "v_cvt_pk_bf16_f32 v%d, v%d, v%d" % (acc + k, acc + 2 * k, acc + 2 * k + 1)]
    return L


def o_store(e, acc, soff):
    nt = NTS[OPT["nt_store"]]
    e.vmop("buffer_store_dwordx4 %s, v%d, s[20:23], %s offen%s" % (vr(acc, 4), P_OA, soff, nt), "o")
    e.vmop("buffer_store_dwordx4 %s, v%d, s[20:23], %s offen offset:32%s" % (vr(acc + 4, 4), P_OA, soff, nt), "o")


def p_read(e, par, f):
    e.ldsop("ds_read_b128 %s, v%d offset:%d" % (vr(P_RING + 4 * (f & 15), 4), P_PA, PBUF[par] + f * 1024), "p%d" % f)


def tile_next(e, d, a):
    e.i("s_add_u32 %s, %s, 8192" % (d, a))
    e.i("s_sub_u32 s31, %s, %d" % (d, NT * 8192))
    e.i("s_cmp_ge_u32 %s, %d" % (d, NT * 8192))
    e.i("s_cselect_b32 %s, s31, %s" % (d, d))


def q_next(e):
    tile_next(e, "s34", "s34")
    e.i("s_sub_u32 s48, s48, 1")
    e.i("s_cmp_le_i32 s48, 0")
    e.i("s_cselect_b32 s34, %d, s34" % (NT * 8192))


def v_dma(e, ks):
    e.i("s_add_u32 m0, s39, %d" % ((ks & 15) * 1024))
    e.i("s_xor_b32 s30, s42, %d" % (ks * 4096))
    e.vmop("buffer_load_dwordx4 v%d, s[16:19], s30 offen%s lds" % (P_VG, NTS[OPT["ntv"]]), "d%d" % ks)


def v_land(e, b):
    e.wv("d%d" % (4 * b + 3))
    for ks in range(4 * b, 4 * b + 4):
        for hf in range(2):
            e.ldsop("ds_read_b64_tr_b16 %s, v%d offset:%d" % (vr(P_V + 4 * ks + 2 * hf, 2), P_TR,
                                                            (ks & 15) * 1024 + 512 * hf), "tr%d" % b)


def pv_interval(e, par, first=False, last=False, nobar=False):
    pp = par ^ 1
    accN, accO = P_ACC[par], P_ACC[pp]
    fill = [[] for _ in range(33)]
    if not first:
        ep = epilogue(accO, P_RI[pp])
        for k in range(8):
            fill[13 + k] += [("v", x) for x in ep[3 * k:3 * k + 3]]
        fill[22] += [("st",)]
    lr = l_reduce(P_RI[par], True)
    fill[4] += [("wl", "l")] + [("v", x) for x in lr[:4]]
    fill[5] += [("v", x) for x in lr[4:8]]
    fill[6] += [("v", x) for x in lr[8:]]
    if not last:
        fill[OPT["qw_slot"]] += [("wv", "qs%d" % pp), ("qw",)]
        fill[OPT["ql_slot"]] += [("ql",)]

    def do_fill(m):
        for it in fill[m]:
            if it[0] == "v":
                e.i(it[1])
            elif it[0] == "wl":
                e.wl(it[1])
            elif it[0] == "wv":
                e.wv(it[1])
            elif it[0] == "st":
                o_store(e, accO, "s35")
            elif it[0] == "qw":
                q_write(e, P_QS[pp], pp)
            elif it[0] == "ql":
                q_load(e, P_QS[par], "qs%d" % par, "s34")

    if OPT["pearly"]:
        reads = {m: [m] for m in range(4)}
        reads.update({4: [4, 5], 5: [6, 7], 6: [8, 9], 7: [10, 11]})
        reads.update({m: [m + 4] for m in range(8, 28)})
    else:
        reads = {m: [m] for m in range(32)}
    for m in range(32):
        if first and m in (20, 24, 28):
            v_land(e, m // 4 - 1)
        if m < 8:
            if not first and not (last and OPT["hoist"]):
                f = 24 + m
                e.i("%s %s, %s, %s, %s" % (MFMA, vr(accO, 16), vr(P_V + 4 * f, 4), vr(P_RING + 4 * (f & 15), 4),
                                           vr(accO, 16)))
        else:
            f = m - 8
            if first and (f & 3) == 0:
                e.wl("tr%d" % (f >> 2))
            g = OPT["wgrp"]
            if f % g == 0:
                e.wl("p%d" % min(f + g - 1, 23))
            e.i("%s %s, %s, %s, %s" % (MFMA, vr(accN, 16), vr(P_V + 4 * f, 4), vr(P_RING + 4 * (f & 15), 4),
                                       "0" if f == 0 else vr(accN, 16)))
        for f in reads.get(m, []):
            p_read(e, par, f)
        if m < 2:
            la = P_LA1 if par else P_LA0
            for k in (2 * m, 2 * m + 1):
                e.ldsop("ds_read2_b32 %s, v%d offset0:%d offset1:%d" % (vr(P_T + 2 * k, 2), la, 64 * k, 64 * k + 32),
                        "l")
        do_fill(m)
        if OPT["searly"] and m == 28:
            q_next(e)
        if OPT["searly"] and m == 29:
            tile_next(e, "s35", "s35")
    if first:
        v_land(e, 7)
    if not OPT["searly"]:
        q_next(e)
        tile_next(e, "s35", "s35")
    e.wl0()
    if not last and not nobar:
        e.bar()


def pv_program(e):
    e.c("---- PV wave prologue")
    if OPT["qfirst"]:
        e.i("s_setprio 3")
        e.i("v_lshrrev_b32 v10, 3, v0")
        e.i("s_lshl_b32 s30, s25, 3")
        e.i("v_add_u32 v10, s30, v10")
        e.i("v_and_b32 v11, 7, v0")
        e.i("v_lshlrev_b32 v12, 8, v10")
        e.i("v_lshl_add_u32 v%d, v11, 4, v12" % P_QG)
        e.i("s_lshl_b32 s36, s43, 13")
        tile_next(e, "s37", "s36")
        q_load(e, P_RING, "q0", "s36")
        q_load(e, P_RING + 8, "q1", "s37")
        if OPT["tlbwarm"]:
            e.c("early touch of the V and Q pages used later")
            e.i("s_lshl_b32 s30, s25, 9")
            e.i("v_lshlrev_b32 v13, 11, v0")
            e.i("v_add_u32 v13, s30, v13")
            e.vmop("buffer_load_dword v14, v13, s[16:19], 0 offen", "tw")
            if OPT["tlbwarm"] >= 2:
                e.i("v_mul_u32_u24 v13, 2304, v0")
                e.i("v_add_u32 v13, s30, v13")
                e.vmop("buffer_load_dword v15, v13, s[12:15], 0 offen", "tw")
        e.i("s_setprio 0")
    e.i("v_and_b32 v8, 31, v0")
    e.i("v_lshrrev_b32 v9, 5, v0")
    e.i("v_lshlrev_b32 v%d, 4, v0" % P_PA)
    e.i("v_lshlrev_b32 v10, 2, v8")
    e.i("v_add_u32 v%d, %d, v10" % (P_LA0, LBUF[0]))
    e.i("v_lshrrev_b32 v10, 3, v0")
    e.i("s_lshl_b32 s30, s25, 3")
    e.i("v_add_u32 v10, s30, v10")
    e.i("v_and_b32 v11, 7, v0")
    e.i("v_lshlrev_b32 v12, 8, v10")
    e.i("v_lshl_add_u32 v%d, v11, 4, v12" % P_QG)
    e.i("s_lshl_b32 s36, s43, 13")
    tile_next(e, "s37", "s36")
    tile_next(e, "s38", "s37")
    e.nst, e.names = 0, e.names + ["| PV:"]
    e.stamp("start")
    if not OPT["qfirst"]:
        q_load(e, P_RING, "q0", "s36")
        q_load(e, P_RING + 8, "q1", "s37")
        q_load(e, P_RING + 16, "q2", "s38")
    e.i("v_mul_u32_u24 v12, %d, v11" % QSTR)
    e.i("v_lshl_add_u32 v12, v10, 4, v12")
    e.i("v_add_u32 v%d, %d, v12" % (P_QW, QBUF[0]))
    e.i("s_lshl_b32 s30, s25, 6")
    e.i("v_lshlrev_b32 v12, 8, v8")
    e.i("v_lshl_add_u32 v12, v9, 4, v12")
    e.i("v_add_u32 v%d, s30, v12" % P_OA)
    e.i("v_lshrrev_b32 v10, 2, v0")
    e.i("v_and_b32 v11, 3, v0")
    e.i("v_lshlrev_b32 v12, 8, v10")
    e.i("v_lshl_add_u32 v12, v11, 4, v12")
    e.i("v_add_u32 v%d, s30, v12" % P_VG)
    if OPT["fakev"]:
        e.i("s_lshl_b32 s31, s25, 10")
        e.i("v_lshlrev_b32 v12, 4, v0")
        e.i("v_add_u32 v%d, s31, v12" % P_VG)
    e.i("v_and_b32 v10, 3, v10")
    e.i("v_lshl_add_u32 v10, v9, 2, v10")
    e.i("v_lshlrev_b32 v10, 6, v10")
    e.i("v_bfe_u32 v12, v0, 4, 1")
    e.i("v_lshl_add_u32 v10, v12, 5, v10")
    e.i("v_and_b32 v12, 1, v11")
    e.i("v_lshl_add_u32 v10, v12, 4, v10")
    e.i("v_lshrrev_b32 v12, 1, v11")
    e.i("v_lshl_add_u32 v10, v12, 3, v10")
    e.i("s_lshl_b32 s39, s25, 14")
    e.i("s_add_u32 s39, s39, %d" % VST)
    e.i("v_add_u32 v%d, s39, v10" % P_TR)

    e.i("v_lshlrev_b32 v10, 2, v8")
    e.i("v_add_u32 v%d, %d, v10" % (P_LA1, LBUF[1]))

    e.i("s_mov_b32 s27, 0")
    e.i("s_mov_b32 s33, s43")
    e.i("s_sub_u32 s35, s36, 8192")
    tile_next(e, "s28", "s38")
    tile_next(e, "s34", "s28")
    e.i("s_mov_b32 s48, %d" % (NT - 4))
    if OPT["prio_pv"]:
        e.i("s_setprio %d" % OPT["prio_pv"])
    if OPT["vdma_early"]:
        for ks in range(16):
            v_dma(e, ks)
    for k, tag in enumerate(("q0", "q1")):
        e.wv(tag)
        e.stamp(tag + " landed")
        q_write(e, P_RING + 8 * k, k)
    e.wl0()
    if OPT["qfirst"]:
        q_load(e, P_RING + 16, "q2", "s38")
    for ks in range(OPT["vmid"]):
        v_dma(e, ks)
    e.bar()
    e.stamp("P1 out")
    if not OPT["vdma_early"]:
        for ks in range(OPT["vmid"], OPT["v1n"]):
            v_dma(e, ks)
    e.stamp("v1 issued")
    e.bar()
    e.stamp("B-1 out")
    for ks in range(OPT["v1n"], 16):
        v_dma(e, ks)
    e.wv("q2")
    q_write(e, P_RING + 16, 0)
    q_load(e, P_QS[1], "qs1", "s28")
    for b in range(4):
        v_land(e, b)
        e.wl0()
        e.stamp("v batch %d" % b)
        for ks in range(4 * b + 16, 4 * b + 20):
            v_dma(e, ks)
    e.wl0()
    e.bar()
    e.stamp("B0 out")
    pv_interval(e, 0, first=True)
    e.stamp("B1 out")
    st = (list(e.lds), list(e.vm))
    e.i("s_mov_b32 s26, 8")
    e.lab("L_pv_loop")
    e.role = "pv"
    pv_interval(e, 1)
    pv_interval(e, 0, nobar=bool(OPT["hoist"]))
    e.i("s_sub_u32 s26, s26, 1")
    e.i("s_cmp_lg_u32 s26, 0")
    if OPT["hoist"]:
        e.i("s_cbranch_scc0 L_pv_exit")
        e.bar()
        e.i("s_branch L_pv_loop")
        e.lab("L_pv_exit")
        for f in range(24, 32):
            e.i("%s %s, %s, %s, %s" % (MFMA, vr(P_ACC[0], 16), vr(P_V + 4 * f, 4), vr(P_RING + 4 * (f & 15), 4),
                                       vr(P_ACC[0], 16)))
        e.bar()
    else:
        e.i("s_cbranch_scc1 L_pv_loop")
    e.role = None
    assert (e.lds, e.vm[-6:]) == (st[0], e.vm[-6:]), (e.lds, e.vm, st)
    pv_interval(e, 1, last=True)
    acc = P_ACC[1]
    for f in range(24, 32):
        e.i("%s %s, %s, %s, %s" % (MFMA, vr(acc, 16), vr(P_V + 4 * f, 4), vr(P_RING + 4 * (f & 15), 4), vr(acc, 16)))
    e.i("s_nop 7")
    e.i("s_nop 7")
    for x in epilogue(acc, P_RI[1]):
        e.i(x)
    o_store(e, acc, "s35")
    e.i("v_mov_b32 v8, %d" % FLAG)
    e.i("v_mov_b32 v9, s27")
    e.i("ds_write_b32 v8, v9")
    e.i("s_waitcnt lgkmcnt(0)")


def pv_fallback(e):
    e.i("buffer_load_dwordx4 %s, v%d, s[12:15], s45 offen" % (vr(16, 4), P_QG))
    e.i("buffer_load_dwordx4 %s, v%d, s[12:15], s45 offen offset:128" % (vr(20, 4), P_QG))
    e.i("s_waitcnt vmcnt(0)")
    e.i("ds_write_b128 v%d, %s" % (P_QW, vr(16, 4)))
    e.i("ds_write_b128 v%d, %s offset:%d" % (P_QW, vr(20, 4), 8 * QSTR))
    e.i("s_waitcnt lgkmcnt(0)")
    e.bar()
    e.bar()
    e.bar()
    for k in range(4):
        e.i("ds_read2_b32 %s, v%d offset0:%d offset1:%d" % (vr(P_T + 2 * k, 2), P_LA0, 64 * k, 64 * k + 32))
    e.i("s_waitcnt lgkmcnt(0)")
    for x in l_reduce(P_RI[0], False):
        e.i(x)
    acc = P_ACC[0]
    for b in range(4):
        for k in range(8):
            e.i("ds_read_b128 %s, v%d offset:%d" % (vr(P_RING + 4 * k, 4), P_PA, (8 * b + k) * 1024))
        e.i("s_waitcnt lgkmcnt(0)")
        for k in range(8):
            f = 8 * b + k
            e.i("%s %s, %s, %s, %s" % (MFMA, vr(acc, 16), vr(P_V + 4 * f, 4), vr(P_RING + 4 * k, 4),
                                       "0" if f == 0 else vr(acc, 16)))
        e.i("s_nop 7")
    e.i("s_nop 7")
    e.i("s_nop 7")
    for x in epilogue(acc, P_RI[0]):
        e.i(x)
    e.i("buffer_store_dwordx4 %s, v%d, s[20:23], s45 offen" % (vr(acc, 4), P_OA))
    e.i("buffer_store_dwordx4 %s, v%d, s[20:23], s45 offen offset:32" % (vr(acc + 4, 4), P_OA))
    e.i("s_waitcnt vmcnt(0)")


def main():
    win = OPT["win"]
    lo, hi = f2u(2.0 ** -win), f2u(2.0 ** win)
    if OPT["force_fb"]:
        hi = f2u(2.0 ** -30)

    e = E()
    h = e.lines
    hdr = open("cdna_kernels/%s.s.ref" % NAME).read().split("\n")
    for ln in hdr:
        if ln.startswith("; @launch"):
            h.append("; @launch grid=(256,1,1) block=(512,1,1) lds=%d" % LDS_BYTES)
        elif ln.startswith(";"):
            h.append(ln)
        else:
            break
    h.append('.amdgcn_target "amdgcn-amd-amdhsa--gfx950"')
    h.append(".text")
    h.append(".globl %s_kernel" % NAME)
    h.append(".p2align 8")
    h.append(".type %s_kernel,@function" % NAME)
    h.append("%s_kernel:" % NAME)
    e.i("s_cmp_ge_u32 s2, 256")
    e.i("s_cbranch_scc1 L_end")
    if OPT["stamps"]:
        e.i("s_memrealtime s[98:99]")
        e.i("s_memtime s[96:97]")
        e.i("s_mov_b32 s49, 0")
    e.i("s_load_dwordx4 s[4:7], s[0:1], 0")
    e.i("s_load_dwordx4 s[8:11], s[0:1], 16")
    e.i("v_lshrrev_b32 v1, 6, v0")
    e.i("v_and_b32 v0, 63, v0")
    e.c("group g = (wg>>4)*8 + (wg&7), half = (wg>>3)&1: both halves of a kv head land on one XCD")
    e.i("s_lshr_b32 s3, s2, 4")
    e.i("s_lshl_b32 s3, s3, 3")
    e.i("s_and_b32 s30, s2, 7")
    e.i("s_add_u32 s3, s3, s30")
    e.i("v_readfirstlane_b32 s24, v1")
    e.i("s_bfe_u32 s30, s2, 0x10003")
    if OPT["halfonly"]:
        e.i("s_cmp_eq_u32 s30, 1")
        e.i("s_cbranch_scc1 L_end")
    if OPT["halfonly"] == 2:
        e.i("s_bitcmp1_b32 s2, 4")
        e.i("s_cbranch_scc1 L_end")
    e.i("s_lshl_b32 s31, s3, 1")
    e.i("s_add_u32 s31, s31, s30")
    e.i("s_mul_i32 s31, s31, %d" % (576 * 256))
    e.i("s_lshl_b32 s32, s3, 17")
    e.i("s_and_b32 s25, s24, 3")
    e.c("key-block permutation (s42, xor mask on byte offsets) and rotation of the q tile order (s43, tile index)")
    e.i("s_and_b32 s42, s3, %d" % OPT["rotk"])
    e.i("s_lshl_b32 s42, s42, 13")
    if OPT["split"]:
        e.i("s_mul_i32 s43, s30, %d" % (10 * 8192))
        e.i("s_xor_b32 s42, s42, s43")
    e.i("s_and_b32 s43, s3, %d" % OPT["rotq"])
    e.i("s_mov_b32 s29, 0x%08x" % f2u(1.4426950408889634 / (128.0 ** 0.5)))
    e.i("s_mov_b32 s49, 0x3f803f80")
    e.i("s_mov_b32 s46, 0x%08x" % lo)
    e.i("s_mov_b32 s47, 0x%08x" % hi)
    e.i("s_waitcnt lgkmcnt(0)")
    e.i("s_add_u32 s12, s4, s31")
    e.i("s_addc_u32 s13, s5, 0")
    e.i("s_mov_b32 s14, %d" % (576 * 256))
    e.i("s_mov_b32 s15, 0x00020000")
    e.i("s_add_u32 s20, s10, s31")
    e.i("s_addc_u32 s21, s11, 0")
    e.i("s_mov_b32 s22, %d" % (576 * 256))
    e.i("s_mov_b32 s23, 0x00020000")
    e.i("s_mov_b32 s18, 131072")
    e.i("s_mov_b32 s19, 0x00020000")
    e.i("s_cmp_ge_u32 s24, 4")
    e.i("s_cbranch_scc1 L_pv")
    e.i("s_add_u32 s16, s6, s32")
    e.i("s_addc_u32 s17, s7, 0")
    qk_program(e)
    e.i("s_branch L_join")
    e.lab("L_pv")
    e.lds, e.vm = [], []
    e.i("s_add_u32 s16, s8, s32")
    e.i("s_addc_u32 s17, s9, 0")
    pv_program(e)
    e.lab("L_join")
    e.c("---- tiles whose row sums left the safe window are redone with the true row max")
    e.bar()
    e.i("v_mov_b32 v8, %d" % FLAG)
    e.i("ds_read_b32 v9, v8")
    e.i("s_waitcnt lgkmcnt(0)")
    e.i("v_readfirstlane_b32 s27, v9")
    e.i("s_nop 3")
    e.i("s_cmp_eq_u32 s27, 0")
    e.i("s_cbranch_scc1 L_done")
    e.i("s_waitcnt vmcnt(0)")
    e.i("s_mov_b32 s44, 0")
    e.lab("L_fb_loop")
    e.i("s_lshr_b32 s30, s27, s44")
    e.i("s_and_b32 s30, s30, 1")
    e.i("s_cmp_eq_u32 s30, 0")
    e.i("s_cbranch_scc1 L_fb_next")
    e.i("s_lshl_b32 s45, s44, 13")
    e.i("s_cmp_ge_u32 s24, 4")
    e.i("s_cbranch_scc1 L_fb_pv")
    qk_fallback(e)
    e.i("s_branch L_fb_next")
    e.lab("L_fb_pv")
    pv_fallback(e)
    e.lab("L_fb_next")
    e.i("s_add_u32 s44, s44, 1")
    e.i("s_cmp_lt_u32 s44, %d" % NT)
    e.i("s_cbranch_scc1 L_fb_loop")
    e.lab("L_done")
    e.i("s_waitcnt vmcnt(0)")
    if OPT["stamps"]:
        e.i("s_memtime s[50:51]")
        e.i("s_memrealtime s[100:101]")
        e.i("s_load_dwordx2 s[4:5], s[0:1], 40")
        e.i("s_waitcnt lgkmcnt(0)")
        if OPT["stamps"] == 2:
            e.i("s_mov_b32 s96, 0")
        e.i("s_mov_b32 s94, s96")
        e.i("s_mov_b32 s95, s50")
        e.i("s_lshl_b32 s30, s2, 3")
        e.i("s_add_u32 s30, s30, s24")
        e.i("s_lshl_b32 s30, s30, 8")
        e.i("s_mov_b64 exec, 1")
        e.i("v_mov_b32 v8, s30")
        for k in range(44):
            e.i("v_mov_b32 v9, s%d" % (52 + k))
            e.i("global_store_dword v8, v9, s[4:5] offset:%d" % (4 * k))
        e.i("v_mov_b32 v9, s98")
        e.i("global_store_dword v8, v9, s[4:5] offset:%d" % (4 * 60))
        e.i("v_mov_b32 v9, s100")
        e.i("global_store_dword v8, v9, s[4:5] offset:%d" % (4 * 61))
        if OPT["todbg"]:
            e.i("s_load_dwordx2 s[4:5], s[0:1], 32")
            e.i("s_waitcnt lgkmcnt(0)")
            e.i("s_lshl_b32 s30, s2, 3")
            e.i("s_add_u32 s30, s30, s24")
            e.i("s_cmp_lg_u32 s30, %d" % (OPT["todbg"] * 8 + 4))
            e.i("s_cbranch_scc1 L_nodbg")
            e.i("v_mov_b32 v8, 0")
            for k, r in enumerate((54, 56, 58, 60, 62, 64, 92, 94, 95)):
                e.i("s_sub_u32 s30, s%d, s52" % r)
                e.i("v_mov_b32 v9, s30")
                e.i("global_store_dword v8, v9, s[4:5] offset:%d" % (4 * k))
            e.i("s_sub_u32 s30, s100, s98")
            e.i("v_mov_b32 v9, s30")
            e.i("global_store_dword v8, v9, s[4:5] offset:%d" % (4 * 9))
            e.lab("L_nodbg")
        e.i("s_waitcnt vmcnt(0)")
    e.lab("L_end")
    e.i("s_endpgm")
    h.append('.section .rodata,"a"')
    h.append(".p2align 6")
    h.append(".amdhsa_kernel %s_kernel" % NAME)
    for x in ("next_free_vgpr 256", "next_free_sgpr %d" % (102 if OPT["stamps"] else 64), "accum_offset 256", "group_segment_fixed_size 0",
              "kernarg_size 48", "user_sgpr_count 2", "user_sgpr_kernarg_segment_ptr 1",
              "system_sgpr_workgroup_id_x 1"):
        h.append("  .amdhsa_" + x)
    h.append(".end_amdhsa_kernel")
    open(OUT, "w").write("\n".join(h) + "\n")
    if e.names:
        print(", ".join(e.names))


main()
```
